```python
import torch

def _softmax(x, axis=-1):
    return torch.softmax(x, dim=axis)
def _gelu(x):
    return torch.nn.functional.gelu(x, approximate="tanh")
def _silu(x):
    return torch.nn.functional.silu(x)
def _sigmoid(x):
    return torch.sigmoid(x)
def _layernorm(x, axis=-1, eps=1e-5):
    m = x.mean(dim=axis, keepdim=True)
    v = x.var(dim=axis, keepdim=True, unbiased=False)
    return (x - m) / torch.sqrt(v + eps)
def _scatter_add(tgt, idx, src, axis=0):
    return tgt.clone().index_add_(axis, idx, src)
def _segment_sum(src, seg, n):
    out = torch.zeros((n,) + src.shape[1:], dtype=src.dtype)
    return out.index_add_(0, seg, src)
def _pad(x, pw):
    flat = tuple(v for pair in reversed(pw) for v in pair)
    return torch.nn.functional.pad(x, flat)

kernel_name = 'recurrent_scan__sliding_block_cached__swiglu_ffn__decode'

def setup_inputs():

    _w = (lambda a: (lambda t: t.to(torch.bfloat16) if t.is_floating_point() else t)(torch.as_tensor(a)))
    def _A_setup():
        B, Sq, D = 1, 1, 576
        Hq, Hkv, Sk, Dh = 32, 16, 16384, 128
        assert Hq % Hkv == 0, (Hq, Hkv)
        return {
            "x": _w((lambda *s: torch.randn(*s, dtype=torch.bfloat16) * 0.05)(B, Sq, D)),
            "k_cache": _w((lambda *s: torch.randn(*s, dtype=torch.bfloat16) * 1.6)(B, Hkv, Sk, Dh)),
            "v_cache": _w((lambda *s: torch.randn(*s, dtype=torch.bfloat16) * 0.2)(B, Hkv, Sk, Dh)),
            "wq": _w((lambda *s: torch.randn(*s, dtype=torch.bfloat16) * 1.6)(D, Hq * Dh) * (D ** -0.5)),
            "wo": _w((lambda *s: torch.randn(*s, dtype=torch.bfloat16) * 0.2)(Hq * Dh, D) * ((Hq * Dh) ** -0.5)),
        }
    _A_in = _A_setup()

    def _B_setup():
        B, S, D, F = 1, 1, 576, 4608
        return {
            "x": _w((lambda *s: torch.randn(*s, dtype=torch.bfloat16) * 0.05)(B, S, D)),
            "w_gate": _w((lambda *s: torch.randn(*s, dtype=torch.bfloat16) * 0.1)(D, F)),
            "w_up": _w((lambda *s: torch.randn(*s, dtype=torch.bfloat16) * 0.1)(D, F)),
            "w_down": _w((lambda *s: torch.randn(*s, dtype=torch.bfloat16) * 0.1)(F, D)),
        }
    _B_in = _B_setup()

    return {
        "A_x": _A_in["x"],
        "A_k_cache": _A_in["k_cache"],
        "A_v_cache": _A_in["v_cache"],
        "A_wq": _A_in["wq"],
        "A_wo": _A_in["wo"],
        "B_x": _B_in["x"],
        "B_w_gate": _B_in["w_gate"],
        "B_w_up": _B_in["w_up"],
        "B_w_down": _B_in["w_down"],
    }

def reference(A_x, A_k_cache, A_v_cache, A_wq, A_wo, B_x, B_w_gate, B_w_up, B_w_down):
    def _A_ref(x, k_cache, v_cache, wq, wo):
        B, Sq, D = x.shape
        Hq, Dh = 32, 128
        Hkv, Sk = k_cache.shape[1], k_cache.shape[2]
        W = min(4096, max(256, Sk // 4))
        rep = Hq // Hkv
        q = (lambda x, *d: x.permute(*d))((x @ wq).reshape(B, Sq, Hq, Dh), 0, 2, 1, 3)
        k = (lambda x, n, axis: torch.repeat_interleave(x, n, dim=axis))(k_cache[:, :, Sk - W:, :], rep, axis=1)
        v = (lambda x, n, axis: torch.repeat_interleave(x, n, dim=axis))(v_cache[:, :, Sk - W:, :], rep, axis=1)
        scores = torch.einsum("bhqd,bhkd->bhqk", q, k) * (Dh ** -0.5)
        p = _softmax(scores, axis=-1)
        o = torch.einsum("bhqk,bhkd->bhqd", p, v)
        return (lambda x, *d: x.permute(*d))(o, 0, 2, 1, 3).reshape(B, Sq, Hq * Dh) @ wo

    def _B_ref(x, w_gate, w_up, w_down):
        g = _silu(x @ w_gate)
        u = x @ w_up
        return (g * u) @ w_down

    x = A_x
    xn = _layernorm(x, axis=-1)
    s = _A_ref(xn, A_k_cache, A_v_cache, A_wq, A_wo)
    g = _silu(_B_ref(xn, B_w_gate, B_w_up, B_w_down))
    return x + s * g
```

```python
import sys
KNAME = "recurrent_scan__sliding_block_cached__swiglu_ffn__decode_kernel"

HEADER = """; Kernarg layout for this problem (96 bytes, ptrs only, base s[0:1]):
"""

QP   = 0x000000
GUP  = 0x040000
OPO  = 0x0D0000
OPML = 0x110000
SP   = 0x120000
DP   = 0x1B0000
STAMPS = 0x400000
WS_BYTES = 268435456
NFFN = 144

L_QS = 0
L_QB = 8192
L_HX = 8704
L_ML = 8960
L_OW = 9216
L_DR = 17408
L_SR = 35840
L_FR = 45056
L_FLG = 45568
LDS_BYTES = 45824

S_WG, S_WAVE, S_G, S_C = 2, 3, 4, 5
SRD = dict(X=40, K=44, V=48, WQ=52, WO=56, WG=60, WU=64, WD=68, OUT=72, DBG=76, WS=80)
PTR = dict(X=16, K=18, V=20, WQ=22, WO=24, BX=26, WG=28, WU=30, WD=32, OUT=34, DBG=36, WS=38)
SIZE = dict(X=1152, K=67108864, V=67108864, WQ=4718592, WO=4718592, WG=5308416, WU=5308416, WD=5308416,
            OUT=1152, DBG=256, WS=WS_BYTES)
S_EX, S_EX2, S_CMP, S_PCNT = 84, 86, 88, 90
S_SCALE, S_LOG2E = 91, 92
POLL_LIMIT = 20000

def f2u(x):
    import struct
    return struct.unpack("<I", struct.pack("<f", x))[0]

class G:
    def __init__(self, stamps=False):
        self.L = []; self.nlab = 0; self.stamps = stamps; self.nst = 0
    def __call__(self, s): self.L.append("  " + s)
    def label(self, n): self.L.append(n + ":")
    def newlabel(self, p="L"):
        self.nlab += 1; return f"{p}_{self.nlab}"
    def comment(self, s): self.L.append("  ; " + s)
    def nop(self, n):
        while n > 0:
            k = min(n, 16); self(f"s_nop {k-1}"); n -= k
    def srd(self, name):
        d, p = SRD[name], PTR[name]
        self(f"s_mov_b32 s{d}, s{p}")
        self(f"s_and_b32 s{d+1}, s{p+1}, 0xffff")
        self(f"s_mov_b32 s{d+2}, {SIZE[name]}")
        self(f"s_mov_b32 s{d+3}, 0x00020000")
    def text(self): return "\n".join(self.L)

def sr(name):
    d = SRD[name]; return f"s[{d}:{d+3}]"

def vq(b): return f"v[{b}:{b+3}]"

def allreduce64(g, v, tmp, op="v_add_f32"):
    for dpp in ("quad_perm:[1,0,3,2]", "quad_perm:[2,3,0,1]", "row_half_mirror", "row_mirror"):
        g.nop(2)
        g(f"{op}_dpp v{v}, v{v}, v{v} {dpp} row_mask:0xf bank_mask:0xf")
    rowswap(g, v, tmp, op)

def rowswap(g, v, tmp, op, do16=True, do32=True):
    if do16:
        g(f"v_mov_b32 v{tmp}, v{v}")
        g.nop(2)
        g(f"v_permlane16_swap_b32 v{v}, v{tmp}")
        g.nop(1)
        g(f"{op} v{v}, v{v}, v{tmp}")
    if do32:
        g(f"v_mov_b32 v{tmp}, v{v}")
        g.nop(2)
        g(f"v_permlane32_swap_b32 v{v}, v{tmp}")
        g.nop(1)
        g(f"{op} v{v}, v{v}, v{tmp}")

def reduce_bits1to4(g, v, tmp, op):
    for r in (2, 4, 8):
        g.nop(2)
        g(f"{op}_dpp v{v}, v{v}, v{v} row_ror:{r} row_mask:0xf bank_mask:0xf")
    rowswap(g, v, tmp, op, do16=True, do32=False)

def rnd_bf16(g, v, tmp):
    g(f"v_cvt_pk_bf16_f32 v{tmp}, v{v}, v{v}")
    g(f"v_lshlrev_b32 v{v}, 16, v{tmp}")

def silu(g, v, t1):
    g(f"v_mul_f32 v{t1}, {hex(f2u(-1.4426950408889634))}, v{v}")
    g(f"v_exp_f32 v{t1}, v{t1}")
    g.nop(1)
    g(f"v_add_f32 v{t1}, 1.0, v{t1}")
    g(f"v_rcp_f32 v{t1}, v{t1}")
    g.nop(1)
    g(f"v_mul_f32 v{v}, v{v}, v{t1}")

def poll_loads(g, loads, tmpv, cnt_spec=None):
    Lp = g.newlabel("POLL"); Ld = g.newlabel("PDONE")
    g(f"s_mov_b64 s[{S_EX}:{S_EX+1}], exec")
    g(f"s_mov_b32 s{S_PCNT}, 0")
    g.label(Lp)
    regs = []
    for (b, w, vo, srdn, so, imm) in loads:
        if w == 4:
            g(f"buffer_load_dwordx4 v[{b}:{b+3}], v{vo}, {sr(srdn)}, {so} offen offset:{imm} sc1")
        elif w == 2:
            g(f"buffer_load_dwordx2 v[{b}:{b+1}], v{vo}, {sr(srdn)}, {so} offen offset:{imm} sc1")
        else:
            g(f"buffer_load_dword v{b}, v{vo}, {sr(srdn)}, {so} offen offset:{imm} sc1")
        regs += list(range(b, b + w))
    if cnt_spec:
        cv, cvo, cso, thr = cnt_spec
        g(f"buffer_load_dword v{cv}, v{cvo}, {sr('DBG')}, {cso} offen sc1")
    g("s_waitcnt vmcnt(0)")
    r = list(regs)
    first = True
    while r:
        if first:
            if len(r) >= 3:
                g(f"v_max3_u32 v{tmpv}, v{r[0]}, v{r[1]}, v{r[2]}"); r = r[3:]
            elif len(r) == 2:
                g(f"v_max_u32 v{tmpv}, v{r[0]}, v{r[1]}"); r = r[2:]
            else:
                g(f"v_mov_b32 v{tmpv}, v{r[0]}"); r = r[1:]
            first = False
        else:
            if len(r) >= 2:
                g(f"v_max3_u32 v{tmpv}, v{tmpv}, v{r[0]}, v{r[1]}"); r = r[2:]
            else:
                g(f"v_max_u32 v{tmpv}, v{tmpv}, v{r[0]}"); r = r[1:]
    g(f"v_cmp_eq_u32 vcc, -1, v{tmpv}")
    if cnt_spec:
        g(f"v_cmp_gt_u32 s[{S_CMP}:{S_CMP+1}], {thr}, v{cv}")
        g.nop(2)
        g(f"s_or_b64 vcc, vcc, s[{S_CMP}:{S_CMP+1}]")
    g.nop(2)
    g("s_and_b64 vcc, vcc, exec")
    g("s_cmp_eq_u64 vcc, 0")
    g(f"s_cbranch_scc1 {Ld}")
    g(f"s_add_u32 s{S_PCNT}, s{S_PCNT}, 1")
    g(f"s_cmp_gt_u32 s{S_PCNT}, {POLL_LIMIT}")
    g(f"s_cbranch_scc1 {Ld}")
    g("s_mov_b64 exec, vcc")
    g(f"s_branch {Lp}")
    g.label(Ld)
    g(f"s_mov_b64 exec, s[{S_EX}:{S_EX+1}]")
    g.nop(1)

def stamp(g, idx):
    if g.stamps:
        g(f"s_memrealtime s[{16+2*idx}:{17+2*idx}]")

def store_stamps(g, n):
    if not g.stamps: return
    g("s_waitcnt lgkmcnt(0)")
    g(f"s_lshl_b32 s6, s{S_WG}, 4"); g(f"s_add_u32 s6, s6, s{S_WAVE}"); g("s_lshl_b32 s6, s6, 6")
    g(f"s_add_u32 s6, s6, {STAMPS}")
    g("v_mov_b32 v2, 0")
    g("v_cmp_eq_u32 vcc, 0, v1")
    g(f"s_and_saveexec_b64 s[{S_EX}:{S_EX+1}], vcc")
    g("v_mov_b32 v3, s94")
    g(f"buffer_store_dword v3, v2, {sr('WS')}, s6 offen offset:0")
    for i in range(n):
        g(f"v_mov_b32 v3, s{16+2*i}")
        g(f"buffer_store_dword v3, v2, {sr('WS')}, s6 offen offset:{4*(i+1)}")
    g(f"s_mov_b64 exec, s[{S_EX}:{S_EX+1}]")
    g("s_waitcnt vmcnt(0)")


FLG_INIT, FLG_CNT, FLG_Q1, FLG_Q2 = 0, 1, 2, 3
def lds_signal(g, idx, va=12, vd=13):
    g(f"v_mov_b32 v{va}, {L_FLG + 4*idx}")
    g(f"v_mov_b32 v{vd}, 1")
    g("v_cmp_eq_u32 vcc, 0, v1")
    g(f"s_and_saveexec_b64 s[{S_EX}:{S_EX+1}], vcc")
    g(f"ds_add_u32 v{va}, v{vd}")
    g(f"s_mov_b64 exec, s[{S_EX}:{S_EX+1}]")

def lds_wait(g, idx, n, va=12, vd=13):
    Lp = g.newlabel("LW"); Ld = g.newlabel("LWD")
    g(f"v_mov_b32 v{va}, {L_FLG + 4*idx}")
    g(f"s_mov_b32 s{S_PCNT}, 0")
    g.label(Lp)
    g(f"ds_read_b32 v{vd}, v{va}")
    g("s_waitcnt lgkmcnt(0)")
    g(f"v_readfirstlane_b32 s{S_PCNT+3}, v{vd}")
    g.nop(1)
    g(f"s_cmp_ge_u32 s{S_PCNT+3}, {n}")
    g(f"s_cbranch_scc1 {Ld}")
    g(f"s_add_u32 s{S_PCNT}, s{S_PCNT}, 1")
    g(f"s_cmp_lt_u32 s{S_PCNT}, 2000000")
    g(f"s_cbranch_scc1 {Lp}")
    g.label(Ld)
```

```python
from gen1 import *

def make_masks(g, lane, mbase, t0, t1):
    g(f"v_and_b32 v{t0}, 7, v{lane}")
    g(f"v_and_b32 v{t1}, 1, v{lane}")
    g(f"v_lshlrev_b32 v{t1}, 4, v{t1}")
    g(f"v_mov_b32 v{mbase}, 0xffff")
    g(f"v_lshlrev_b32 v{t1}, v{t1}, v{mbase}")
    g(f"v_lshrrev_b32 v{t0}, 1, v{t0}")
    for r in range(4):
        g(f"v_cmp_eq_u32 vcc, {r}, v{t0}")
        g.nop(2)
        g(f"v_cndmask_b32 v{mbase+r}, 0, v{t1}, vcc")

def mfma(g, d, a, b, c):
    cs = "0" if c is None else vq(c)
    g(f"v_mfma_f32_16x16x32_bf16 {vq(d)}, {vq(a)}, {vq(b)}, {cs}")

def gemv_chain(g, xx_list, tbase, d, mbase, aset):
    n = len(xx_list)
    def ands(u):
        a = aset[u % 2]
        for r in range(4):
            g(f"v_and_b32 v{a+r}, v{xx_list[u]}, v{mbase+r}")
    ands(0)
    for u in range(n):
        if u + 1 < n: ands(u + 1)
        else: g.nop(2)
        mfma(g, d, aset[u % 2], tbase + 4 * u, None if u == 0 else d)

def build(stamps=False):
    g = G(stamps)
    g(f"s_cmp_ge_u32 s{S_WG}, 256")
    g("s_cbranch_scc1 L_EXIT")
    if stamps: g("s_memrealtime s[94:95]")
    g("s_load_dwordx16 s[16:31], s[0:1], 0")
    g("s_load_dwordx8 s[32:39], s[0:1], 64")
    g("v_lshrrev_b32 v2, 6, v0")
    g("v_and_b32 v1, 63, v0")
    g(f"s_lshr_b32 s{S_G}, s{S_WG}, 4")
    g(f"s_and_b32 s{S_C}, s{S_WG}, 15")
    g(f"v_readfirstlane_b32 s{S_WAVE}, v2")
    g(f"s_mov_b32 s{S_SCALE}, {hex(f2u(128 ** -0.5))}")
    g(f"s_mov_b32 s{S_LOG2E}, {hex(f2u(1.4426950408889634))}")
    g("v_lshrrev_b32 v2, 4, v1")
    g("v_and_b32 v3, 15, v1")
    g("s_waitcnt lgkmcnt(0)")
    g.srd("WS")
    g(f"s_cmp_ge_u32 s{S_WAVE}, 8")
    g("s_cbranch_scc1 L_AWAVE")
    build_w(g)
    build_a(g)
    g.label("L_EXIT")
    return g

def build_a(g):
    stamps = g.stamps
    g.label("L_AWAVE")
    g.srd("K"); g.srd("V")
    g(f"s_sub_u32 s6, s{S_WAVE}, 8")
    g(f"s_lshl_b32 s7, s{S_G}, 22")
    g(f"s_lshl_b32 s8, s{S_C}, 16")
    g("s_add_u32 s7, s7, s8")
    g("s_lshl_b32 s8, s6, 13")
    g("s_add_u32 s7, s7, s8")
    g("s_add_u32 s7, s7, 0x300000")
    g("s_add_u32 s8, s7, 4096")
    g("v_and_b32 v4, 3, v3")
    g("v_lshlrev_b32 v4, 2, v4")
    g("v_lshrrev_b32 v5, 2, v3")
    g("v_add_u32 v4, v4, v5")
    g("v_lshlrev_b32 v4, 8, v4")
    g("v_lshlrev_b32 v5, 4, v2")
    g("v_add_u32 v4, v4, v5")
    g("v_lshlrev_b32 v5, 4, v1")
    Lnoinit = g.newlabel("NOINIT")
    g(f"s_cmp_lg_u32 s{S_WAVE}, 15")
    g(f"s_cbranch_scc1 {Lnoinit}")
    g("s_setprio 3")
    emit_init(g)
    g("s_setprio 0")
    Lj15 = g.newlabel("J15")
    g(f"s_branch {Lj15}")
    g.label(Lnoinit)
    g("s_barrier")
    g.label(Lj15)
    g("s_barrier")
    KB, VB = 32, 64
    for t in range(2):
        for s in range(4):
            so = "s7" if t == 0 else "s8"
            g(f"buffer_load_dwordx4 {vq(KB + (t*4+s)*4)}, v4, {sr('K')}, {so} offen offset:{s*64} nt")
    for n in range(8):
        so = "s7" if n < 4 else "s8"
        g(f"buffer_load_dwordx4 {vq(VB + 4*n)}, v5, {sr('V')}, {so} offen offset:{(n%4)*1024} nt")
    MB = 120
    make_masks(g, 1, MB, 8, 9)
    g("v_lshrrev_b32 v6, 3, v1")
    g("v_and_b32 v6, 1, v6")
    g("v_lshlrev_b32 v6, 8, v6")
    g("v_lshl_add_u32 v6, v2, 4, v6")
    g(f"v_add_u32 v6, {L_QB}, v6")
    lds_wait(g, FLG_Q2, 4)
    QB_ = 96
    for s in range(4):
        g(f"ds_read_b128 {vq(QB_ + 4*s)}, v6 offset:{s*64}")
    g("s_waitcnt vmcnt(8) lgkmcnt(0)")
    stamp(g, 0)
    SB = 112
    for s in range(4):
        for t in range(2):
            mfma(g, SB + 4*t, KB + (t*4+s)*4, QB_ + 4*s, None if s == 0 else SB + 4*t)
    g.nop(8)
    for k in range(0, 8, 2):
        a, b = SB + k, SB + k + 1
        g(f"v_cvt_pk_bf16_f32 v8, v{a}, v{b}")
        g(f"v_lshlrev_b32 v{a}, 16, v8")
        g(f"v_and_b32 v{b}, 0xffff0000, v8")
        g(f"v_mul_f32 v{a}, s{S_SCALE}, v{a}")
        g(f"v_mul_f32 v{b}, s{S_SCALE}, v{b}")
        g(f"v_cvt_pk_bf16_f32 v8, v{a}, v{b}")
        g(f"v_lshlrev_b32 v{a}, 16, v8")
        g(f"v_and_b32 v{b}, 0xffff0000, v8")
    g(f"v_max3_f32 v12, v{SB}, v{SB+1}, v{SB+2}")
    g(f"v_max3_f32 v12, v12, v{SB+3}, v{SB+4}")
    g(f"v_max3_f32 v12, v12, v{SB+5}, v{SB+6}")
    g(f"v_max_f32 v12, v12, v{SB+7}")
    rowswap(g, 12, 9, "v_max_f32")
    g(f"v_mul_f32 v10, s{S_LOG2E}, v12")
    for k in range(8):
        g(f"v_fma_f32 v{SB+k}, v{SB+k}, s{S_LOG2E}, -v10")
    for k in range(8):
        g(f"v_exp_f32 v{SB+k}, v{SB+k}")
    g.nop(1)
    g(f"v_add_f32 v13, v{SB}, v{SB+1}")
    for k in range(2, 8):
        g(f"v_add_f32 v13, v13, v{SB+k}")
    rowswap(g, 13, 9, "v_add_f32")
    for k in range(8):
        g(f"v_cvt_pk_bf16_f32 v{SB+k}, v{SB+k}, v{SB+k}")
    g("s_waitcnt vmcnt(0)")
    stamp(g, 1)
    DO = 124
    aset = [16, 20]
    def ands(n):
        for r in range(4):
            g(f"v_and_b32 v{aset[n%2]+r}, v{SB+n}, v{MB+r}")
    ands(0)
    for n in range(8):
        if n + 1 < 8: ands(n + 1)
        else: g.nop(2)
        mfma(g, DO, aset[n % 2], VB + 4*n, None if n == 0 else DO)
    g("v_lshrrev_b32 v8, 1, v2")
    g("v_lshlrev_b32 v8, 9, v8")
    g("v_lshl_add_u32 v8, v3, 5, v8")
    g("v_and_b32 v9, 1, v2")
    g("v_lshl_add_u32 v8, v9, 4, v8")
    g("s_lshl_b32 s9, s6, 10")
    g(f"s_add_u32 s9, s9, {L_OW}")
    g("v_add_u32 v8, s9, v8")
    g("v_lshrrev_b32 v9, 3, v1")
    g("v_and_b32 v9, 1, v9")
    g("v_lshlrev_b32 v9, 3, v9")
    g("s_lshl_b32 s9, s6, 4")
    g(f"s_add_u32 s9, s9, {L_ML}")
    g("v_add_u32 v9, s9, v9")
    g("ds_write_b64 v9, v[12:13]")
    g.nop(4)
    g(f"ds_write_b128 v8, {vq(DO)}")
    g("s_waitcnt lgkmcnt(0)")
    g("s_barrier")
    stamp(g, 2)
    Lend = g.newlabel("AEND")
    g("s_cmp_ge_u32 s6, 4")
    g(f"s_cbranch_scc1 {Lend}")
    g("s_lshr_b32 s9, s6, 1")
    g("s_lshl_b32 s10, s9, 3")
    g(f"s_add_u32 s10, s10, {L_ML}")
    g("v_mov_b32 v8, s10")
    g("s_lshl_b32 s10, s6, 8")
    g("v_lshl_add_u32 v7, v1, 2, s10")
    g(f"v_add_u32 v9, {L_OW}, v7")
    for w in range(8):
        g(f"ds_read_b64 v[{32+2*w}:{33+2*w}], v8 offset:{w*16}")
    for w in range(8):
        g(f"ds_read_b32 v{48+w}, v9 offset:{w*1024}")
    g("s_waitcnt lgkmcnt(0)")
    g("v_max3_f32 v10, v32, v34, v36")
    g("v_max3_f32 v10, v10, v38, v40")
    g("v_max3_f32 v10, v10, v42, v44")
    g("v_max_f32 v10, v10, v46")
    g(f"v_mul_f32 v11, s{S_LOG2E}, v10")
    for w in range(8):
        g(f"v_fma_f32 v{32+2*w}, v{32+2*w}, s{S_LOG2E}, -v11")
    for w in range(8):
        g(f"v_exp_f32 v{32+2*w}, v{32+2*w}")
    g.nop(1)
    g("v_mul_f32 v11, v32, v33")
    g("v_mul_f32 v12, v32, v48")
    for w in range(1, 8):
        g(f"v_fmac_f32 v11, v{32+2*w}, v{33+2*w}")
        g(f"v_fmac_f32 v12, v{32+2*w}, v{48+w}")
    g(f"s_lshl_b32 s10, s{S_WG}, 10")
    g(f"s_add_u32 s10, s10, {OPO}")
    g(f"buffer_store_dword v12, v7, {sr('WS')}, s10 offen sc1")
    g("s_and_b32 s11, s6, 1")
    g("s_cmp_eq_u32 s11, 0")
    Lnoml = g.newlabel("NOML")
    g(f"s_cbranch_scc0 {Lnoml}")
    g(f"s_lshl_b32 s10, s{S_WG}, 4")
    g(f"s_add_u32 s10, s10, {OPML}")
    g("s_lshl_b32 s11, s9, 3")
    g("s_add_u32 s10, s10, s11")
    g("v_mov_b32 v8, 0")
    g("v_cmp_eq_u32 vcc, 0, v1")
    g(f"s_and_saveexec_b64 s[{S_EX}:{S_EX+1}], vcc")
    g(f"buffer_store_dwordx2 v[10:11], v8, {sr('WS')}, s10 offen sc1")
    g(f"s_mov_b64 exec, s[{S_EX}:{S_EX+1}]")
    g.label(Lnoml)
    g.label(Lend)
    stamp(g, 3)
    store_stamps(g, 6)
    g("s_branch L_EXIT")

def emit_init(g):
    g.srd("DBG")
    for r in range(4):
        g(f"v_mov_b32 v{8+r}, -1")
    g(f"s_lshl_b32 s9, s{S_WG}, 10")
    g(f"s_add_u32 s10, s9, {QP}")
    g(f"buffer_store_dwordx4 v[8:11], v5, {sr('WS')}, s10 offen sc1")
    g(f"s_add_u32 s10, s9, {OPO}")
    g(f"buffer_store_dwordx4 v[8:11], v5, {sr('WS')}, s10 offen sc1")
    g(f"s_lshl_b32 s10, s{S_WG}, 4")
    g(f"s_add_u32 s10, s10, {OPML}")
    g("v_mov_b32 v12, 0")
    g(f"buffer_store_dwordx4 v[8:11], v12, {sr('WS')}, s10 offen sc1")
    g("v_and_b32 v13, 1, v1")
    g("v_lshlrev_b32 v13, 4, v13")
    g("v_lshrrev_b32 v14, 1, v1")
    g("v_lshl_add_u32 v12, v14, 13, v13")
    g(f"s_lshl_b32 s11, s{S_WG}, 5")
    g(f"s_add_u32 s10, s11, {SP}")
    g(f"buffer_store_dwordx4 v[8:11], v12, {sr('WS')}, s10 offen sc1")
    g(f"s_add_u32 s10, s10, {32*8192}")
    g(f"buffer_store_dwordx4 v[8:11], v12, {sr('WS')}, s10 offen sc1")
    g(f"s_add_u32 s10, s10, {32*8192}")
    g("v_cmp_gt_u32 vcc, 16, v1")
    g(f"s_and_saveexec_b64 s[{S_EX}:{S_EX+1}], vcc")
    g(f"buffer_store_dwordx4 v[8:11], v12, {sr('WS')}, s10 offen sc1")
    g(f"s_mov_b64 exec, s[{S_EX}:{S_EX+1}]")
    Lnf = g.newlabel("INITNF")
    g(f"s_cmp_ge_u32 s{S_WG}, {NFFN}")
    g(f"s_cbranch_scc1 {Lnf}")
    for m in range(2):
        g(f"s_lshl_b32 s10, s{S_G}, 1")
        g(f"s_add_u32 s10, s10, {m}")
        g("s_lshl_b32 s10, s10, 4")
        g(f"s_add_u32 s10, s10, s{S_C}")
        g("s_lshl_b32 s10, s10, 11")
        g(f"s_add_u32 s10, s10, {GUP}")
        g(f"buffer_store_dwordx4 v[8:11], v5, {sr('WS')}, s10 offen sc1")
        g(f"buffer_store_dwordx4 v[8:11], v5, {sr('WS')}, s10 offen offset:1024 sc1")
    g("s_movk_i32 s10, 4608")
    g("v_mul_lo_u32 v12, v14, s10")
    g("v_add_u32 v12, v12, v13")
    g(f"s_add_u32 s10, s11, {DP}")
    g(f"buffer_store_dwordx4 v[8:11], v12, {sr('WS')}, s10 offen sc1")
    g(f"s_add_u32 s10, s10, {32*4608}")
    g(f"buffer_store_dwordx4 v[8:11], v12, {sr('WS')}, s10 offen sc1")
    g(f"s_add_u32 s10, s10, {32*4608}")
    g(f"s_and_saveexec_b64 s[{S_EX}:{S_EX+1}], vcc")
    g(f"buffer_store_dwordx4 v[8:11], v12, {sr('WS')}, s10 offen sc1")
    g(f"s_mov_b64 exec, s[{S_EX}:{S_EX+1}]")
    g.label(Lnf)
    g("s_barrier")
    stamp(g, 4)
    g("s_waitcnt vmcnt(0)")
    stamp(g, 5)
    lds_signal(g, FLG_INIT)
    g(f"s_lshl_b32 s10, s{S_G}, 4")
    g("v_mov_b32 v12, 0")
    g("v_mov_b32 v13, 1")
    g("v_cmp_eq_u32 vcc, 0, v1")
    g(f"s_and_saveexec_b64 s[{S_EX}:{S_EX+1}], vcc")
    g(f"buffer_atomic_add v13, v12, {sr('DBG')}, s10 offen sc1")
    g(f"s_mov_b64 exec, s[{S_EX}:{S_EX+1}]")
```

```python
from gen1 import *
from gen1b import make_masks, mfma, gemv_chain, build, build_a, emit_init
import gen1b

MBW = 25
XX = list(range(16, 25))
ASET = [32, 36]
D1, D2 = 40, 44
T1, T2 = 56, 92

def build_w(g):
    stamps = g.stamps
    g.srd("X"); g.srd("DBG"); g.srd("WO"); g.srd("WD"); g.srd("OUT")
    Lz = g.newlabel("ZF")
    g(f"s_cmp_lg_u32 s{S_WAVE}, 0")
    g(f"s_cbranch_scc1 {Lz}")
    for r in range(4): g(f"v_mov_b32 v{8+r}, 0")
    g(f"v_mov_b32 v12, {L_FLG}")
    g("ds_write_b128 v12, v[8:11]")
    g("s_waitcnt lgkmcnt(0)")
    g.label(Lz)
    g("s_barrier")
    stamp(g, 11)
    g("v_lshlrev_b32 v31, 4, v1")
    g("v_lshlrev_b32 v30, 5, v3")
    g("v_lshl_add_u32 v30, v2, 4, v30")
    g(f"buffer_load_dwordx4 v[48:51], v31, {sr('X')}, 0 offen")
    g(f"buffer_load_dwordx4 v[52:55], v31, {sr('X')}, 0 offen offset:1024")
    g("v_lshlrev_b32 v8, 1, v1")
    g(f"s_mul_i32 s6, s{S_C}, 72")
    g(f"buffer_load_ushort v29, v8, {sr('X')}, s6 offen")
    Lr = {k: g.newlabel("ROLE") for k in ("lo_f", "lo_n", "hi_f", "hi_n")}
    Ljoin = g.newlabel("P1JOIN")
    g(f"s_cmp_ge_u32 s{S_WG}, {NFFN}")
    g(f"s_cbranch_scc1 {Lr['lo_n']}")
    g(f"s_cmp_ge_u32 s{S_WAVE}, 2")
    g(f"s_cbranch_scc1 {Lr['hi_f']}")
    g.label(Lr["lo_f"]); phase1(g, True, True);  g(f"s_branch {Ljoin}")
    g.label(Lr["hi_f"]); phase1(g, False, True); g(f"s_branch {Ljoin}")
    g.label(Lr["lo_n"])
    g(f"s_cmp_ge_u32 s{S_WAVE}, 2")
    g(f"s_cbranch_scc1 {Lr['hi_n']}")
    phase1(g, True, False); g(f"s_branch {Ljoin}")
    g.label(Lr["hi_n"]); phase1(g, False, False)
    g.label(Ljoin)
    stamp(g, 0)
    Lbc = g.newlabel("BC")
    g(f"s_cmp_lg_u32 s{S_WAVE}, 0")
    g(f"s_cbranch_scc1 {Lbc}")
    g("v_and_b32 v14, 15, v1")
    g("v_lshlrev_b32 v14, 4, v14")
    Lp = g.newlabel("CPOLL"); Ld = g.newlabel("CDONE")
    g(f"s_mov_b32 s{S_PCNT}, 0")
    g.label(Lp)
    g(f"buffer_load_dword v12, v14, {sr('DBG')}, 0 offen sc1")
    g("s_waitcnt vmcnt(0)")
    g("v_cmp_gt_u32 vcc, 16, v12")
    g.nop(2)
    g("s_cmp_eq_u64 vcc, 0")
    g(f"s_cbranch_scc1 {Ld}")
    g(f"s_add_u32 s{S_PCNT}, s{S_PCNT}, 1")
    g(f"s_cmp_gt_u32 s{S_PCNT}, {POLL_LIMIT}")
    g(f"s_cbranch_scc1 {Ld}")
    g(f"s_branch {Lp}")
    g.label(Ld)
    lds_signal(g, FLG_CNT)
    g.label(Lbc)
    lds_wait(g, FLG_CNT, 1)
    g(f"s_lshl_b32 s6, s{S_G}, 4")
    g(f"s_lshl_b32 s7, s{S_WAVE}, 1")
    g("s_add_u32 s6, s6, s7")
    g("s_lshl_b32 s6, s6, 10")
    g(f"s_add_u32 s6, s6, {QP}")
    g(f"s_lshl_b32 s8, s{S_G}, 4")
    g("v_mov_b32 v14, 0")
    loads = [(48, 4, 31, "WS", "s6", 0), (52, 4, 31, "WS", "s6", 1024)]
    Lnoh = g.newlabel("NOH"); Lh = g.newlabel("HJOIN")
    g(f"s_cmp_ge_u32 s{S_WG}, {NFFN}")
    g(f"s_cbranch_scc1 {Lnoh}")
    g(f"s_cmp_lt_u32 s{S_WAVE}, 4")
    g(f"s_cbranch_scc1 {Lnoh}")
    g("v_lshrrev_b32 v8, 5, v1")
    g("v_lshlrev_b32 v8, 4, v8")
    g("v_bfe_u32 v9, v1, 1, 4")
    g("v_add_u32 v8, v8, v9")
    g("v_lshlrev_b32 v8, 11, v8")
    g("v_and_b32 v9, 1, v1")
    g("v_lshl_add_u32 v15, v9, 4, v8")
    g(f"s_lshl_b32 s9, s{S_G}, 16")
    g(f"s_lshl_b32 s10, s{S_C}, 7")
    g("s_add_u32 s9, s9, s10")
    g(f"s_sub_u32 s10, s{S_WAVE}, 4")
    g("s_lshl_b32 s10, s10, 5")
    g("s_add_u32 s9, s9, s10")
    g(f"s_add_u32 s9, s9, {GUP}")
    poll_loads(g, loads + [(8, 4, 15, "WS", "s9", 0)], 13)
    g(f"s_branch {Lh}")
    g.label(Lnoh)
    poll_loads(g, loads, 13)
    g.label(Lh)
    stamp(g, 1)
    for r in range(4):
        g(f"v_add_f32 v{48+r}, v{48+r}, v{52+r}")
    g(f"s_lshl_b32 s6, s{S_WAVE}, 10")
    g("v_add_u32 v12, s6, v31")
    g(f"ds_write_b128 v12, v[48:51] offset:{L_QS}")
    lds_signal(g, FLG_Q1)
    Lq = g.newlabel("NOQSUM")
    g(f"s_cmp_ge_u32 s{S_WAVE}, 4")
    g(f"s_cbranch_scc1 {Lq}")
    lds_wait(g, FLG_Q1, 8)
    g(f"s_lshl_b32 s6, s{S_WAVE}, 8")
    g("v_lshl_add_u32 v12, v1, 2, s6")
    for w in range(8):
        g(f"ds_read_b32 v{48+w}, v12 offset:{L_QS + w*1024}")
    g("s_waitcnt lgkmcnt(0)")
    g("v_add_f32 v48, v48, v49"); g("v_add_f32 v50, v50, v51"); g("v_add_f32 v52, v52, v53"); g("v_add_f32 v54, v54, v55")
    g("v_add_f32 v48, v48, v50"); g("v_add_f32 v52, v52, v54"); g("v_add_f32 v48, v48, v52")
    g("v_cvt_pk_bf16_f32 v48, v48, v48")
    g("v_lshrrev_b32 v12, 1, v12")
    g(f"ds_write_b16 v12, v48 offset:{L_QB}")
    lds_signal(g, FLG_Q2)
    g.label(Lq)
    stamp(g, 2)
    Lp2n = g.newlabel("P2NONE"); Lp2d = g.newlabel("P2DOWN"); Lp2j = g.newlabel("P2JOIN")
    g("v_lshrrev_b32 v6, 3, v3")
    g("v_lshl_add_u32 v6, v2, 1, v6")
    g("s_movk_i32 s6, 1152")
    g("v_mul_lo_u32 v6, v6, s6")
    g("v_and_b32 v7, 7, v3")
    g("v_lshl_add_u32 v6, v7, 4, v6")
    g(f"s_cmp_lt_u32 s{S_WAVE}, 2")
    g(f"s_cbranch_scc1 {Lp2j}")
    g(f"s_cmp_ge_u32 s{S_WAVE}, 4")
    g(f"s_cbranch_scc1 {Lp2d}")
    g(f"s_lshl_b32 s6, s{S_WG}, 4")
    g(f"s_sub_u32 s7, s{S_WAVE}, 2")
    g("s_lshl_b32 s7, s7, 3")
    g("s_add_u32 s6, s6, s7")
    g("s_mul_i32 s6, s6, 1152")
    for cb in range(9):
        g(f"buffer_load_dwordx4 {vq(T2 + 4*cb)}, v6, {sr('WO')}, s6 offen offset:{cb*128} nt")
    g(f"s_branch {Lp2j}")
    g.label(Lp2d)
    g(f"s_cmp_ge_u32 s{S_WG}, {NFFN}")
    g(f"s_cbranch_scc1 {Lp2j}")
    down_task(g)
    g.label(Lp2j)
    g("s_barrier")
    stamp(g, 3)
    La = g.newlabel("AFT_WO"); Lb = g.newlabel("AFT_DR"); Lc = g.newlabel("AFT_J")
    g(f"s_cmp_lt_u32 s{S_WAVE}, 2")
    g(f"s_cbranch_scc1 {Lc}")
    g(f"s_cmp_lt_u32 s{S_WAVE}, 4")
    g(f"s_cbranch_scc1 {La}")
    g(f"s_cmp_ge_u32 s{S_WG}, {NFFN}")
    g(f"s_cbranch_scc1 {Lc}")
    g(f"s_cmp_ge_u32 s{S_WAVE}, 7")
    g(f"s_cbranch_scc1 {Lc}")
    red_publish(g, L_DR, 8, DP, 4608, 4)
    g(f"s_branch {Lc}")
    g.label(La)
    wo_task(g)
    g.label(Lc)
    stamp(g, 4)
    g("s_barrier")
    Ld_ = g.newlabel("AFT_SR")
    g(f"s_cmp_ge_u32 s{S_WAVE}, 3")
    g(f"s_cbranch_scc1 {Ld_}")
    red_publish(g, L_SR, 4, SP, 8192, 0)
    g.label(Ld_)
    stamp(g, 5)
    Lfin = g.newlabel("NOFIN")
    g(f"s_cmp_ge_u32 s{S_WG}, 72")
    g(f"s_cbranch_scc1 {Lfin}")
    final(g)
    g.label(Lfin)
    stamp(g, 6)
    store_stamps(g, 12)
    g("s_branch L_EXIT")

def phase1(g, has_wq, has_gu):
    nl = 0
    if has_wq:
        g.srd("WQ")
        g("v_lshlrev_b32 v4, 13, v2")
        g("v_lshl_add_u32 v4, v3, 4, v4")
        g(f"s_mul_i32 s6, s{S_C}, {36*8192}")
        g(f"s_lshl_b32 s7, s{S_G}, 1")
        g(f"s_add_u32 s7, s7, s{S_WAVE}")
        g("s_lshl_b32 s7, s7, 8")
        g("s_add_u32 s6, s6, s7")
        for u in range(9):
            g(f"buffer_load_dwordx4 {vq(T2 + 4*u)}, v4, {sr('WQ')}, s6 offen nt")
            if u < 8: g(f"s_add_u32 s6, s6, {4*8192}")
        nl += 9
    if has_gu:
        g.srd("WG"); g.srd("WU")
        g("s_movk_i32 s6, 9216")
        g("v_mul_lo_u32 v5, v2, s6")
        g("v_lshl_add_u32 v5, v3, 4, v5")
        g(f"s_mul_i32 s6, s{S_C}, {36*9216}")
        g(f"s_lshl_b32 s7, s{S_G}, 2")
        g(f"s_and_b32 s8, s{S_WAVE}, 3")
        g("s_add_u32 s7, s7, s8")
        g("s_lshl_b32 s7, s7, 8")
        g("s_add_u32 s6, s6, s7")
        Lup = g.newlabel("UP"); Lj = g.newlabel("GUJ")
        g(f"s_cmp_ge_u32 s{S_WAVE}, 4")
        g(f"s_cbranch_scc1 {Lup}")
        for name, lab in (("WG", None), ("WU", Lup)):
            if lab: g.label(lab)
            g("s_mov_b32 s7, s6")
            for u in range(9):
                g(f"buffer_load_dwordx4 {vq(T1 + 4*u)}, v5, {sr(name)}, s7 offen nt")
                if u < 8: g(f"s_add_u32 s7, s7, {4*9216}")
            if name == "WG": g(f"s_branch {Lj}")
        g.label(Lj)
        nl += 9
    g("s_barrier")
    if not (has_wq or has_gu):
        return
    make_masks(g, 1, MBW, 8, 9)
    g("v_lshlrev_b32 v7, 2, v2")
    g(f"s_waitcnt vmcnt({nl})")
    stamp(g, 7)
    g("v_mov_b32 v8, 0"); g("v_mov_b32 v9, 0")
    for k in range(8):
        r = 48 + k
        g(f"v_lshlrev_b32 v10, 16, v{r}")
        g(f"v_and_b32 v11, 0xffff0000, v{r}")
        g("v_add_f32 v8, v8, v10")
        g("v_fmac_f32 v9, v10, v10")
        g("v_add_f32 v8, v8, v11")
        g("v_fmac_f32 v9, v11, v11")
    allreduce64(g, 8, 10)
    allreduce64(g, 9, 10)
    inv = hex(f2u(1.0 / 576.0))
    g(f"v_mul_f32 v8, {inv}, v8")
    g(f"v_mul_f32 v9, {inv}, v9")
    g("v_fma_f32 v9, -v8, v8, v9")
    rnd_bf16(g, 8, 10)
    rnd_bf16(g, 9, 10)
    g(f"v_add_f32 v9, {hex(f2u(1e-5))}, v9")
    rnd_bf16(g, 9, 10)
    g("v_sqrt_f32 v9, v9")
    g.nop(1)
    rnd_bf16(g, 9, 10)
    g("v_rcp_f32 v9, v9")
    g("v_lshlrev_b32 v29, 16, v29")
    g("v_sub_f32 v29, v29, v8")
    rnd_bf16(g, 29, 10)
    g("v_mul_f32 v29, v29, v9")
    g("v_cvt_pk_bf16_f32 v29, v29, v29")
    for u in range(9):
        g(f"v_add_u32 v10, {16*u}, v7")
        g(f"ds_bpermute_b32 v{XX[u]}, v10, v29")
    g("s_waitcnt lgkmcnt(0)")
    stamp(g, 8)
    if has_wq:
        g(f"s_waitcnt vmcnt({9 if has_gu else 0})")
        stamp(g, 9)
        gemv_chain(g, XX, T2, D2, MBW, ASET)
        g(f"s_lshl_b32 s6, s{S_WG}, 10")
        g(f"s_lshl_b32 s7, s{S_WAVE}, 9")
        g("s_add_u32 s6, s6, s7")
        g(f"s_add_u32 s6, s6, {QP}")
        lds_wait(g, FLG_INIT, 1)
        g("v_cmp_gt_u32 vcc, 32, v1")
        g.nop(6)
        g(f"s_and_saveexec_b64 s[{S_EX}:{S_EX+1}], vcc")
        g(f"buffer_store_dwordx4 {vq(D2)}, v30, {sr('WS')}, s6 offen sc1")
        g(f"s_mov_b64 exec, s[{S_EX}:{S_EX+1}]")
    if has_gu:
        g(f"s_waitcnt vmcnt({1 if has_wq else 0})")
        stamp(g, 10)
        gemv_chain(g, XX, T1, D1, MBW, ASET)
        g(f"s_lshl_b32 s6, s{S_G}, 1")
        g(f"s_lshr_b32 s7, s{S_WAVE}, 2")
        g("s_add_u32 s6, s6, s7")
        g("s_lshl_b32 s6, s6, 4")
        g(f"s_add_u32 s6, s6, s{S_C}")
        g("s_lshl_b32 s6, s6, 11")
        g(f"s_and_b32 s7, s{S_WAVE}, 3")
        g("s_lshl_b32 s7, s7, 9")
        g("s_add_u32 s6, s6, s7")
        g(f"s_add_u32 s6, s6, {GUP}")
        if not has_wq: lds_wait(g, FLG_INIT, 1)
        g("v_cmp_gt_u32 vcc, 32, v1")
        g.nop(6)
        g(f"s_and_saveexec_b64 s[{S_EX}:{S_EX+1}], vcc")
        g(f"buffer_store_dwordx4 {vq(D1)}, v30, {sr('WS')}, s6 offen sc1")
        g(f"s_mov_b64 exec, s[{S_EX}:{S_EX+1}]")

def operand_from_x8(g, wave_sub):
    g(f"s_lshl_b32 s6, s{S_WAVE}, 5")
    g(f"s_add_u32 s6, s6, {L_HX}")
    g("v_and_b32 v12, 1, v1")
    g("v_lshl_add_u32 v12, v12, 4, s6")
    g("v_cmp_gt_u32 vcc, 2, v1")
    g.nop(2)
    g(f"s_and_saveexec_b64 s[{S_EX}:{S_EX+1}], vcc")
    g("ds_write_b128 v12, v[8:11]")
    g(f"s_mov_b64 exec, s[{S_EX}:{S_EX+1}]")
    g("v_lshrrev_b32 v12, 3, v3")
    g("v_lshl_add_u32 v12, v2, 1, v12")
    g("v_lshl_add_u32 v12, v12, 2, s6")
    g("s_waitcnt lgkmcnt(0)")
    g("ds_read_b32 v16, v12")
    g("s_waitcnt lgkmcnt(0)")
    g("v_cvt_pk_bf16_f32 v16, v16, v16")

def nine_mfma(g, red_base, wsub_sreg):
    make_masks(g, 1, MBW, 12, 13)
    for r in range(4):
        g(f"v_and_b32 v{ASET[0]+r}, v16, v{MBW+r}")
    g("s_waitcnt vmcnt(0)")
    g.nop(2)
    for cb in range(9):
        mfma(g, T1 + 4*cb, ASET[0], T2 + 4*cb, None)
    g("v_lshrrev_b32 v12, 3, v3")
    g("s_movk_i32 s7, 2304")
    g("v_mul_lo_u32 v13, v12, s7")
    g("v_and_b32 v14, 7, v3")
    g("v_lshl_add_u32 v13, v14, 5, v13")
    g("v_and_b32 v14, 1, v2")
    g("v_lshl_add_u32 v13, v14, 4, v13")
    g(f"s_mul_i32 s7, {wsub_sreg}, 4608")
    g(f"s_add_u32 s7, s7, {red_base}")
    g("v_add_u32 v13, s7, v13")
    g("v_lshrrev_b32 v14, 1, v2")
    g("v_cmp_eq_u32 vcc, v12, v14")
    g.nop(2)
    g(f"s_and_saveexec_b64 s[{S_EX}:{S_EX+1}], vcc")
    for cb in range(9):
        g(f"ds_write_b128 v13, {vq(T1 + 4*cb)} offset:{cb*256}")
    g(f"s_mov_b64 exec, s[{S_EX}:{S_EX+1}]")
    g("s_waitcnt lgkmcnt(0)")

def down_task(g):
    g(f"s_lshl_b32 s6, s{S_WG}, 5")
    g(f"s_sub_u32 s7, s{S_WAVE}, 4")
    g("s_lshl_b32 s7, s7, 3")
    g("s_add_u32 s6, s6, s7")
    g("s_mul_i32 s6, s6, 1152")
    for cb in range(9):
        g(f"buffer_load_dwordx4 {vq(T2 + 4*cb)}, v6, {sr('WD')}, s6 offen offset:{cb*128} nt")
    for r in range(4):
        reduce_bits1to4(g, 8 + r, 12, "v_add_f32")
    for r in range(4):
        rnd_bf16(g, 8 + r, 12)
    for r in range(4):
        g(f"v_mov_b32 v{48+r}, v{8+r}")
    g.nop(2)
    for r in range(4):
        g(f"v_permlane32_swap_b32 v{8+r}, v{48+r}")
    g.nop(1)
    for r in range(4):
        silu(g, 8 + r, 12)
        rnd_bf16(g, 8 + r, 12)
        g(f"v_mul_f32 v{8+r}, v{8+r}, v{48+r}")
        rnd_bf16(g, 8 + r, 12)
    operand_from_x8(g, None)
    g(f"s_sub_u32 s8, s{S_WAVE}, 4")
    nine_mfma(g, L_DR, "s8")

def wo_task(g):
    g("v_bfe_u32 v12, v1, 1, 4")
    g("v_and_b32 v13, 1, v1")
    g("v_lshlrev_b32 v14, 10, v12")
    g("v_lshl_add_u32 v14, v13, 4, v14")
    g("v_lshlrev_b32 v15, 4, v12")
    g(f"s_lshl_b32 s6, s{S_G}, 14")
    g(f"s_lshr_b32 s7, s{S_C}, 3")
    g("s_lshl_b32 s9, s7, 9")
    g("s_add_u32 s6, s6, s9")
    g(f"s_and_b32 s9, s{S_C}, 7")
    g("s_lshl_b32 s9, s9, 6")
    g("s_add_u32 s6, s6, s9")
    g(f"s_sub_u32 s8, s{S_WAVE}, 2")
    g("s_lshl_b32 s9, s8, 5")
    g("s_add_u32 s6, s6, s9")
    g(f"s_add_u32 s6, s6, {OPO}")
    g(f"s_lshl_b32 s9, s{S_G}, 8")
    g("s_lshl_b32 s7, s7, 3")
    g("s_add_u32 s9, s9, s7")
    g(f"s_add_u32 s9, s9, {OPML}")
    poll_loads(g, [(8, 4, 14, "WS", "s6", 0), (48, 2, 15, "WS", "s9", 0)], 13)
    g("v_mov_b32 v50, v48")
    reduce_bits1to4(g, 50, 12, "v_max_f32")
    g("v_sub_f32 v48, v48, v50")
    g(f"v_mul_f32 v48, s{S_LOG2E}, v48")
    g("v_exp_f32 v48, v48")
    g.nop(1)
    g("v_mul_f32 v49, v49, v48")
    reduce_bits1to4(g, 49, 12, "v_add_f32")
    for r in range(4):
        g(f"v_mul_f32 v{8+r}, v{8+r}, v48")
        reduce_bits1to4(g, 8 + r, 12, "v_add_f32")
    g("v_rcp_f32 v49, v49")
    g.nop(1)
    for r in range(4):
        g(f"v_mul_f32 v{8+r}, v{8+r}, v49")
        rnd_bf16(g, 8 + r, 12)
    operand_from_x8(g, None)
    nine_mfma(g, L_SR, "s8")

def red_publish(g, red_base, nsum, dst, cbstride, wave0):
    g(f"s_sub_u32 s6, s{S_WAVE}, {wave0}")
    g("s_lshl_b32 s6, s6, 6")
    g("v_add_u32 v12, s6, v1")
    g("v_cmp_gt_u32 vcc, 144, v12")
    g.nop(2)
    g(f"s_and_saveexec_b64 s[{S_EX}:{S_EX+1}], vcc")
    Lsk = g.newlabel("REDSK")
    g(f"s_cbranch_execz {Lsk}")
    g("v_lshlrev_b32 v13, 4, v12")
    g(f"v_add_u32 v13, {red_base}, v13")
    for k in range(nsum):
        g(f"ds_read_b128 {vq(56 + 4*k)}, v13 offset:{k*2304}")
    g("s_waitcnt lgkmcnt(0)")
    for k in range(1, nsum):
        for r in range(4):
            g(f"v_add_f32 v{56+r}, v{56+r}, v{56+4*k+r}")
    g("v_lshrrev_b32 v13, 1, v12")
    g(f"s_mov_b32 s6, {cbstride}")
    g("v_mul_lo_u32 v13, v13, s6")
    g("v_and_b32 v14, 1, v12")
    g("v_lshl_add_u32 v13, v14, 4, v13")
    g(f"s_lshl_b32 s6, s{S_WG}, 5")
    g(f"s_add_u32 s6, s6, {dst}")
    g(f"buffer_store_dwordx4 v[56:59], v13, {sr('WS')}, s6 offen sc1")
    g.label(Lsk)
    g(f"s_mov_b64 exec, s[{S_EX}:{S_EX+1}]")

def final(g):
    g(f"s_lshl_b32 s6, s{S_WAVE}, 6")
    g("v_add_u32 v12, s6, v1")
    g("v_lshlrev_b32 v14, 4, v12")
    g("v_mov_b32 v15, v14")
    g("v_cmp_gt_u32 vcc, 288, v12")
    g.nop(2)
    g("v_mov_b32 v13, 0xf0000000")
    g("v_cndmask_b32 v15, v13, v15, vcc")
    g(f"s_lshl_b32 s6, s{S_WG}, 13")
    g(f"s_add_u32 s6, s6, {SP}")
    g(f"s_mul_i32 s7, s{S_WG}, 4608")
    g(f"s_add_u32 s7, s7, {DP}")
    g("v_and_b32 v11, 15, v1")
    g("v_lshlrev_b32 v11, 4, v11")
    g("v_lshlrev_b32 v10, 1, v1")
    g(f"s_lshl_b32 s8, s{S_WG}, 4")
    g(f"buffer_load_ushort v9, v10, {sr('X')}, s8 offen")
    poll_loads(g, [(48, 4, 14, "WS", "s6", 0), (52, 4, 15, "WS", "s7", 0)], 13)
    for r in range(8):
        reduce_bits1to4(g, 48 + r, 12, "v_add_f32")
        rowswap(g, 48 + r, 12, "v_add_f32", do16=False, do32=True)
    g(f"s_lshl_b32 s6, s{S_WAVE}, 6")
    g(f"s_add_u32 s6, s6, {L_FR}")
    g("v_lshl_add_u32 v12, v1, 5, s6")
    g("v_cmp_gt_u32 vcc, 2, v1")
    g.nop(2)
    g(f"s_and_saveexec_b64 s[{S_EX}:{S_EX+1}], vcc")
    g("ds_write_b128 v12, v[48:51]")
    g("ds_write_b128 v12, v[52:55] offset:16")
    g(f"s_mov_b64 exec, s[{S_EX}:{S_EX+1}]")
    g("s_waitcnt lgkmcnt(0)")
    g("s_barrier")
    Lf = g.newlabel("FINW0")
    g(f"s_cmp_lg_u32 s{S_WAVE}, 0")
    g(f"s_cbranch_scc1 {Lf}")
    g("v_lshrrev_b32 v12, 2, v1")
    g("v_lshlrev_b32 v12, 5, v12")
    g("v_and_b32 v13, 3, v1")
    g("v_lshl_add_u32 v12, v13, 2, v12")
    g(f"v_add_u32 v12, {L_FR}, v12")
    g("v_cmp_gt_u32 vcc, 8, v1")
    g.nop(2)
    g(f"s_and_saveexec_b64 s[{S_EX}:{S_EX+1}], vcc")
    for w in range(8):
        g(f"ds_read_b32 v{48+w}, v12 offset:{w*64}")
        g(f"ds_read_b32 v{56+w}, v12 offset:{w*64+16}")
    g("s_waitcnt lgkmcnt(0)")
    for w in range(1, 8):
        g(f"v_add_f32 v48, v48, v{48+w}")
        g(f"v_add_f32 v56, v56, v{56+w}")
    rnd_bf16(g, 48, 12)
    rnd_bf16(g, 56, 12)
    silu(g, 56, 12)
    rnd_bf16(g, 56, 12)
    g("v_mul_f32 v48, v48, v56")
    rnd_bf16(g, 48, 12)
    g("v_lshlrev_b32 v9, 16, v9")
    g("v_add_f32 v48, v48, v9")
    g("v_cvt_pk_bf16_f32 v48, v48, v48")
    g(f"buffer_store_short v48, v10, {sr('OUT')}, s8 offen")
    g(f"s_mov_b64 exec, s[{S_EX}:{S_EX+1}]")
    g.label(Lf)

gen1b.build_w = build_w

def full(stamps=False, vgpr=128):
    g = build(stamps)
    return HEADER + f"""; @launch grid=(256,1,1) block=(1024,1,1) lds={LDS_BYTES}
.amdgcn_target "amdgcn-amd-amdhsa--gfx950"
.text
.globl {KNAME}
.p2align 8
.type {KNAME},@function
{KNAME}:
{g.text()}
  s_endpgm
.section .rodata,"a"
.p2align 6
.amdhsa_kernel {KNAME}
  .amdhsa_next_free_vgpr {vgpr}
  .amdhsa_next_free_sgpr 102
  .amdhsa_accum_offset {vgpr}
  .amdhsa_group_segment_fixed_size 0
  .amdhsa_kernarg_size 96
  .amdhsa_user_sgpr_count 2
  .amdhsa_user_sgpr_kernarg_segment_ptr 1
  .amdhsa_system_sgpr_workgroup_id_x 1
.end_amdhsa_kernel
"""

if __name__ == "__main__":
    out = sys.argv[1] if len(sys.argv) > 1 else "k1.s"
    st = len(sys.argv) > 2 and sys.argv[2] == "stamps"
    open(out, "w").write(full(st))
    print("wrote", out)
```

```python
import sys, struct
KNAME = "recurrent_scan__sliding_block_cached__swiglu_ffn__decode_kernel"

HEADER = """; Kernarg layout for this problem (96 bytes, ptrs only, base s[0:1]):
"""

QP   = 0x000000
GUP  = 0x040000
OPO  = 0x0D0000
OPML = 0x110000
SP   = 0x120000
DP   = 0x1B0000
EPOCH = 0x210000
STAMPS = 0x400000
WS_BYTES = 268435456
NFFN = 144
TAGMASK = 0xFFF

L_QS = 0
L_QB = 8192
L_HX = 8704
L_ML = 8960
L_OW = 9216
L_DR = 17408
L_SR = 35840
L_FR = 45056
L_FLG = 45568
L_XN = 45632
LDS_BYTES = 45888
FLG_LN, FLG_Q1, FLG_Q2, FLG_ATT, FLG_DR, FLG_SR, FLG_FR = 0, 1, 2, 3, 4, 5, 6

S_WG, S_WAVE, S_G, S_C = 2, 3, 4, 5
SRD = dict(X=40, K=44, V=48, WQ=52, WO=56, WG=60, WU=64, WD=68, OUT=72, WS=80)
PTR = dict(X=16, K=18, V=20, WQ=22, WO=24, BX=26, WG=28, WU=30, WD=32, OUT=34, DBG=36, WS=38)
SIZE = dict(X=1152, K=67108864, V=67108864, WQ=4718592, WO=4718592, WG=5308416, WU=5308416, WD=5308416,
            OUT=1152, WS=WS_BYTES)
S_EX, S_EX2, S_CMP, S_PCNT = 84, 86, 88, 90
S_SCALE, S_LOG2E, S_T3 = 91, 92, 93
S_EPOCH, S_TAG = 96, 97
POLL_LIMIT = 20000

def f2u(x):
    return struct.unpack("<I", struct.pack("<f", x))[0]

class G:
    def __init__(self, stamps=False):
        self.L = []; self.nlab = 0; self.stamps = stamps
    def __call__(self, s): self.L.append("  " + s)
    def label(self, n): self.L.append(n + ":")
    def newlabel(self, p="L"):
        self.nlab += 1; return f"{p}_{self.nlab}"
    def nop(self, n):
        while n > 0:
            k = min(n, 16); self(f"s_nop {k-1}"); n -= k
    def srd(self, name):
        d, p = SRD[name], PTR[name]
        self(f"s_mov_b32 s{d}, s{p}")
        self(f"s_and_b32 s{d+1}, s{p+1}, 0xffff")
        self(f"s_mov_b32 s{d+2}, {SIZE[name]}")
        self(f"s_mov_b32 s{d+3}, 0x00020000")
    def text(self): return "\n".join(self.L)

def sr(name):
    d = SRD[name]; return f"s[{d}:{d+3}]"
def vq(b): return f"v[{b}:{b+3}]"

def rowswap(g, v, tmp, op, do16=True, do32=True):
    if do16:
        g(f"v_mov_b32 v{tmp}, v{v}")
        g.nop(2)
        g(f"v_permlane16_swap_b32 v{v}, v{tmp}")
        g.nop(1)
        g(f"{op} v{v}, v{v}, v{tmp}")
    if do32:
        g(f"v_mov_b32 v{tmp}, v{v}")
        g.nop(2)
        g(f"v_permlane32_swap_b32 v{v}, v{tmp}")
        g.nop(1)
        g(f"{op} v{v}, v{v}, v{tmp}")

def allreduce64(g, v, tmp, op="v_add_f32"):
    for dpp in ("quad_perm:[1,0,3,2]", "quad_perm:[2,3,0,1]", "row_half_mirror", "row_mirror"):
        g.nop(2)
        g(f"{op}_dpp v{v}, v{v}, v{v} {dpp} row_mask:0xf bank_mask:0xf")
    rowswap(g, v, tmp, op)

def reduce_bits1to4(g, v, tmp, op):
    for r in (2, 4, 8):
        g.nop(2)
        g(f"{op}_dpp v{v}, v{v}, v{v} row_ror:{r} row_mask:0xf bank_mask:0xf")
    rowswap(g, v, tmp, op, do16=True, do32=False)

def rnd_bf16(g, v, tmp):
    g(f"v_cvt_pk_bf16_f32 v{tmp}, v{v}, v{v}")
    g(f"v_lshlrev_b32 v{v}, 16, v{tmp}")

def silu(g, v, t1):
    g(f"v_mul_f32 v{t1}, {hex(f2u(-1.4426950408889634))}, v{v}")
    g(f"v_exp_f32 v{t1}, v{t1}")
    g.nop(1)
    g(f"v_add_f32 v{t1}, 1.0, v{t1}")
    g(f"v_rcp_f32 v{t1}, v{t1}")
    g.nop(1)
    g(f"v_mul_f32 v{v}, v{v}, v{t1}")

def tag_regs(g, vm, vt):
    g(f"s_add_u32 s{S_TAG}, s{S_EPOCH}, 1")
    g(f"s_and_b32 s{S_TAG}, s{S_TAG}, {TAGMASK}")
    g(f"v_mov_b32 v{vm}, {TAGMASK}")
    g(f"v_mov_b32 v{vt}, s{S_TAG}")

def add_tag(g, regs, vm, vt):
    for r in regs:
        g(f"v_bfi_b32 v{r}, v{vm}, v{vt}, v{r}")

def poll_loads(g, loads, tmpv, vt, strip=True):
    Lp = g.newlabel("POLL"); Ld = g.newlabel("PDONE")
    g(f"s_mov_b64 s[{S_EX}:{S_EX+1}], exec")
    g(f"s_mov_b32 s{S_PCNT}, 0")
    g.label(Lp)
    regs = []
    for (b, w, vo, srdn, so, imm) in loads:
        op = {4: "dwordx4", 2: "dwordx2", 1: "dword"}[w]
        dst = f"v[{b}:{b+w-1}]" if w > 1 else f"v{b}"
        g(f"buffer_load_{op} {dst}, v{vo}, {sr(srdn)}, {so} offen offset:{imm} sc1")
        regs += list(range(b, b + w))
    g("s_waitcnt vmcnt(0)")
    t2 = tmpv + 1
    g(f"v_xor_b32 v{tmpv}, v{regs[0]}, v{vt}")
    for r in regs[1:]:
        g(f"v_xor_b32 v{t2}, v{r}, v{vt}")
        g(f"v_or_b32 v{tmpv}, v{tmpv}, v{t2}")
    g(f"v_and_b32 v{tmpv}, {TAGMASK}, v{tmpv}")
    g(f"v_cmp_ne_u32 vcc, 0, v{tmpv}")
    g.nop(2)
    g("s_and_b64 vcc, vcc, exec")
    g("s_cmp_eq_u64 vcc, 0")
    g(f"s_cbranch_scc1 {Ld}")
    g(f"s_add_u32 s{S_PCNT}, s{S_PCNT}, 1")
    g(f"s_cmp_gt_u32 s{S_PCNT}, {POLL_LIMIT}")
    g(f"s_cbranch_scc1 {Ld}")
    g("s_mov_b64 exec, vcc")
    g(f"s_branch {Lp}")
    g.label(Ld)
    g(f"s_mov_b64 exec, s[{S_EX}:{S_EX+1}]")
    g.nop(1)
    if strip:
        for r in regs:
            g(f"v_and_b32 v{r}, {hex(0xFFFFFFFF ^ TAGMASK)}, v{r}")

def lds_signal(g, idx, va=12, vd=13):
    g(f"v_mov_b32 v{va}, {L_FLG + 4*idx}")
    g(f"v_mov_b32 v{vd}, 1")
    g("v_cmp_eq_u32 vcc, 0, v1")
    g(f"s_and_saveexec_b64 s[{S_EX}:{S_EX+1}], vcc")
    g(f"ds_add_u32 v{va}, v{vd}")
    g(f"s_mov_b64 exec, s[{S_EX}:{S_EX+1}]")

def lds_wait(g, idx, n, va=12, vd=13):
    Lp = g.newlabel("LW"); Ld = g.newlabel("LWD")
    g(f"v_mov_b32 v{va}, {L_FLG + 4*idx}")
    g(f"s_mov_b32 s{S_PCNT}, 0")
    g.label(Lp)
    g(f"ds_read_b32 v{vd}, v{va}")
    g("s_waitcnt lgkmcnt(0)")
    g(f"v_readfirstlane_b32 s{S_T3}, v{vd}")
    g.nop(1)
    g(f"s_cmp_ge_u32 s{S_T3}, {n}")
    g(f"s_cbranch_scc1 {Ld}")
    g(f"s_add_u32 s{S_PCNT}, s{S_PCNT}, 1")
    g(f"s_cmp_lt_u32 s{S_PCNT}, 2000000")
    g(f"s_cbranch_scc1 {Lp}")
    g.label(Ld)

def stamp(g, idx):
    if g.stamps:
        g(f"s_memrealtime s[{16+2*idx}:{17+2*idx}]")

def store_stamps(g, n):
    if not g.stamps: return
    g("s_waitcnt lgkmcnt(0)")
    g(f"s_lshl_b32 s6, s{S_WG}, 4"); g(f"s_add_u32 s6, s6, s{S_WAVE}"); g("s_lshl_b32 s6, s6, 6")
    g(f"s_add_u32 s6, s6, {STAMPS}")
    g("v_mov_b32 v2, 0")
    g("v_cmp_eq_u32 vcc, 0, v1")
    g(f"s_and_saveexec_b64 s[{S_EX}:{S_EX+1}], vcc")
    g("v_mov_b32 v3, s94")
    g(f"buffer_store_dword v3, v2, {sr('WS')}, s6 offen offset:0")
    for i in range(n):
        g(f"v_mov_b32 v3, s{16+2*i}")
        g(f"buffer_store_dword v3, v2, {sr('WS')}, s6 offen offset:{4*(i+1)}")
    g(f"s_mov_b64 exec, s[{S_EX}:{S_EX+1}]")
    g("s_waitcnt vmcnt(0)")

def make_masks(g, lane, mbase, t0, t1):
    g(f"v_and_b32 v{t0}, 7, v{lane}")
    g(f"v_and_b32 v{t1}, 1, v{lane}")
    g(f"v_lshlrev_b32 v{t1}, 4, v{t1}")
    g(f"v_mov_b32 v{mbase}, 0xffff")
    g(f"v_lshlrev_b32 v{t1}, v{t1}, v{mbase}")
    g(f"v_lshrrev_b32 v{t0}, 1, v{t0}")
    for r in range(4):
        g(f"v_cmp_eq_u32 vcc, {r}, v{t0}")
        g.nop(2)
        g(f"v_cndmask_b32 v{mbase+r}, 0, v{t1}, vcc")

def mfma(g, d, a, b, c):
    cs = "0" if c is None else vq(c)
    g(f"v_mfma_f32_16x16x32_bf16 {vq(d)}, {vq(a)}, {vq(b)}, {cs}")

def gemv_chain(g, xx_list, tbase, d, mbase, aset):
    n = len(xx_list)
    def ands(u):
        a = aset[u % 2]
        for r in range(4):
            g(f"v_and_b32 v{a+r}, v{xx_list[u]}, v{mbase+r}")
    ands(0)
    for u in range(n):
        if u + 1 < n: ands(u + 1)
        else: g.nop(2)
        mfma(g, d, aset[u % 2], tbase + 4 * u, None if u == 0 else d)
```

```python
from gen2 import *
import gen2

QP   = 0x000000
GUP  = 0x040000
OPO  = 0x0D0000
OPML = 0x110000
PP   = 0x120000
EPOCH = 0x250000
L_QS = 0
L_QB = 8192
L_HX = 8704
L_ML = 8960
L_OW = 9216
L_DR = 17408
L_SR = 35840
L_FR = 45056
L_FLG = 45568
L_XN = 45632
LDS_BYTES = 45632 + 2304
gen2.L_FLG = L_FLG

MBW = 25
XX = list(range(16, 25))
ASET = [32, 36]
D1 = 40
T1, T2 = 56, 92
VM, VT = 29, 7

def build(stamps=False):
    g = G(stamps)
    g(f"s_cmp_ge_u32 s{S_WG}, 256")
    g("s_cbranch_scc1 L_EXIT")
    if stamps: g("s_memrealtime s[94:95]")
    g("s_load_dwordx16 s[16:31], s[0:1], 0")
    g("s_load_dwordx8 s[32:39], s[0:1], 64")
    g("v_lshrrev_b32 v2, 6, v0")
    g("v_and_b32 v1, 63, v0")
    g(f"s_lshr_b32 s{S_G}, s{S_WG}, 4")
    g(f"s_and_b32 s{S_C}, s{S_WG}, 15")
    g(f"v_readfirstlane_b32 s{S_WAVE}, v2")
    g(f"s_mov_b32 s{S_SCALE}, {hex(f2u(128 ** -0.5))}")
    g(f"s_mov_b32 s{S_LOG2E}, {hex(f2u(1.4426950408889634))}")
    g("v_lshrrev_b32 v2, 4, v1")
    g("v_and_b32 v3, 15, v1")
    g("s_waitcnt lgkmcnt(0)")
    g(f"s_add_u32 s98, s{PTR['WS']}, {EPOCH}")
    g(f"s_addc_u32 s99, s{PTR['WS']+1}, 0")
    g(f"s_load_dword s{S_EPOCH}, s[98:99], 0")
    g.srd("WS")
    g(f"s_cmp_ge_u32 s{S_WAVE}, 8")
    g("s_cbranch_scc1 L_AWAVE")
    build_w(g)
    build_a(g)
    g.label("L_EXIT")
    return g

def build_a(g):
    g.label("L_AWAVE")
    g.srd("K"); g.srd("V")
    g(f"s_sub_u32 s6, s{S_WAVE}, 8")
    g(f"s_lshl_b32 s7, s{S_G}, 22")
    g(f"s_lshl_b32 s8, s{S_C}, 16")
    g("s_add_u32 s7, s7, s8")
    g("s_lshl_b32 s8, s6, 13")
    g("s_add_u32 s7, s7, s8")
    g("s_add_u32 s7, s7, 0x300000")
    g("s_add_u32 s8, s7, 4096")
    g("v_and_b32 v4, 3, v3")
    g("v_lshlrev_b32 v4, 2, v4")
    g("v_lshrrev_b32 v5, 2, v3")
    g("v_add_u32 v4, v4, v5")
    g("v_lshlrev_b32 v4, 8, v4")
    g("v_lshlrev_b32 v5, 4, v2")
    g("v_add_u32 v4, v4, v5")
    g("v_lshlrev_b32 v5, 4, v1")
    g("s_barrier")
    KB, VB = 32, 64
    for t in range(2):
        for s in range(4):
            so = "s7" if t == 0 else "s8"
            g(f"buffer_load_dwordx4 {vq(KB + (t*4+s)*4)}, v4, {sr('K')}, {so} offen offset:{s*64} nt")
    for n in range(8):
        so = "s7" if n < 4 else "s8"
        g(f"buffer_load_dwordx4 {vq(VB + 4*n)}, v5, {sr('V')}, {so} offen offset:{(n%4)*1024} nt")
    MB = 120
    make_masks(g, 1, MB, 8, 9)
    g("v_lshrrev_b32 v6, 3, v1")
    g("v_and_b32 v6, 1, v6")
    g("v_lshlrev_b32 v6, 8, v6")
    g("v_lshl_add_u32 v6, v2, 4, v6")
    g(f"v_add_u32 v6, {L_QB}, v6")
    lds_wait(g, FLG_Q2, 4)
    QB_ = 96
    for s in range(4):
        g(f"ds_read_b128 {vq(QB_ + 4*s)}, v6 offset:{s*64}")
    g("s_waitcnt vmcnt(8) lgkmcnt(0)")
    stamp(g, 0)
    SB = 112
    for s in range(4):
        for t in range(2):
            mfma(g, SB + 4*t, KB + (t*4+s)*4, QB_ + 4*s, None if s == 0 else SB + 4*t)
    g.nop(8)
    for k in range(0, 8, 2):
        a, b = SB + k, SB + k + 1
        g(f"v_cvt_pk_bf16_f32 v8, v{a}, v{b}")
        g(f"v_lshlrev_b32 v{a}, 16, v8")
        g(f"v_and_b32 v{b}, 0xffff0000, v8")
        g(f"v_mul_f32 v{a}, s{S_SCALE}, v{a}")
        g(f"v_mul_f32 v{b}, s{S_SCALE}, v{b}")
        g(f"v_cvt_pk_bf16_f32 v8, v{a}, v{b}")
        g(f"v_lshlrev_b32 v{a}, 16, v8")
        g(f"v_and_b32 v{b}, 0xffff0000, v8")
    g(f"v_max3_f32 v12, v{SB}, v{SB+1}, v{SB+2}")
    g(f"v_max3_f32 v12, v12, v{SB+3}, v{SB+4}")
    g(f"v_max3_f32 v12, v12, v{SB+5}, v{SB+6}")
    g(f"v_max_f32 v12, v12, v{SB+7}")
    rowswap(g, 12, 9, "v_max_f32")
    g(f"v_mul_f32 v10, s{S_LOG2E}, v12")
    for k in range(8):
        g(f"v_fma_f32 v{SB+k}, v{SB+k}, s{S_LOG2E}, -v10")
    for k in range(8):
        g(f"v_exp_f32 v{SB+k}, v{SB+k}")
    g.nop(1)
    g(f"v_add_f32 v13, v{SB}, v{SB+1}")
    for k in range(2, 8):
        g(f"v_add_f32 v13, v13, v{SB+k}")
    rowswap(g, 13, 9, "v_add_f32")
    for k in range(8):
        g(f"v_cvt_pk_bf16_f32 v{SB+k}, v{SB+k}, v{SB+k}")
    g("s_waitcnt vmcnt(0)")
    stamp(g, 1)
    DO = 124
    aset = [16, 20]
    def ands(n):
        for r in range(4):
            g(f"v_and_b32 v{aset[n%2]+r}, v{SB+n}, v{MB+r}")
    ands(0)
    for n in range(8):
        if n + 1 < 8: ands(n + 1)
        else: g.nop(2)
        mfma(g, DO, aset[n % 2], VB + 4*n, None if n == 0 else DO)
    g("v_lshrrev_b32 v8, 1, v2")
    g("v_lshlrev_b32 v8, 9, v8")
    g("v_lshl_add_u32 v8, v3, 5, v8")
    g("v_and_b32 v9, 1, v2")
    g("v_lshl_add_u32 v8, v9, 4, v8")
    g("s_lshl_b32 s9, s6, 10")
    g(f"s_add_u32 s9, s9, {L_OW}")
    g("v_add_u32 v8, s9, v8")
    g("v_lshrrev_b32 v9, 3, v1")
    g("v_and_b32 v9, 1, v9")
    g("v_lshlrev_b32 v9, 3, v9")
    g("s_lshl_b32 s9, s6, 4")
    g(f"s_add_u32 s9, s9, {L_ML}")
    g("v_add_u32 v9, s9, v9")
    g("ds_write_b64 v9, v[12:13]")
    g.nop(4)
    g(f"ds_write_b128 v8, {vq(DO)}")
    lds_signal(g, FLG_ATT, 14, 15)
    stamp(g, 2)
    Lend = g.newlabel("AEND")
    g("s_cmp_ge_u32 s6, 4")
    g(f"s_cbranch_scc1 {Lend}")
    AVM, AVT = 28, 29
    tag_regs(g, AVM, AVT)
    g("s_lshr_b32 s9, s6, 1")
    g("s_lshl_b32 s10, s9, 3")
    g(f"s_add_u32 s10, s10, {L_ML}")
    g("v_mov_b32 v8, s10")
    g("s_lshl_b32 s10, s6, 8")
    g("v_lshl_add_u32 v7, v1, 2, s10")
    g(f"v_add_u32 v9, {L_OW}, v7")
    lds_wait(g, FLG_ATT, 8, 14, 15)
    stamp(g, 3)
    for w in range(8):
        g(f"ds_read_b64 v[{32+2*w}:{33+2*w}], v8 offset:{w*16}")
    for w in range(8):
        g(f"ds_read_b32 v{48+w}, v9 offset:{w*1024}")
    g("s_waitcnt lgkmcnt(0)")
    g("v_max3_f32 v10, v32, v34, v36")
    g("v_max3_f32 v10, v10, v38, v40")
    g("v_max3_f32 v10, v10, v42, v44")
    g("v_max_f32 v10, v10, v46")
    g(f"v_mul_f32 v11, s{S_LOG2E}, v10")
    for w in range(8):
        g(f"v_fma_f32 v{32+2*w}, v{32+2*w}, s{S_LOG2E}, -v11")
    for w in range(8):
        g(f"v_exp_f32 v{32+2*w}, v{32+2*w}")
    g.nop(1)
    g("v_mul_f32 v11, v32, v33")
    g("v_mul_f32 v12, v32, v48")
    for w in range(1, 8):
        g(f"v_fmac_f32 v11, v{32+2*w}, v{33+2*w}")
        g(f"v_fmac_f32 v12, v{32+2*w}, v{48+w}")
    add_tag(g, [10, 11, 12], AVM, AVT)
    g(f"s_lshl_b32 s10, s{S_WG}, 10")
    g(f"s_add_u32 s10, s10, {OPO}")
    g(f"buffer_store_dword v12, v7, {sr('WS')}, s10 offen sc1")
    g("s_and_b32 s11, s6, 1")
    g("s_cmp_eq_u32 s11, 0")
    Lnoml = g.newlabel("NOML")
    g(f"s_cbranch_scc0 {Lnoml}")
    g(f"s_lshl_b32 s10, s{S_WG}, 1")
    g("s_add_u32 s10, s10, s9")
    g("s_lshl_b32 s10, s10, 4")
    g(f"s_add_u32 s10, s10, {OPML}")
    g("v_mov_b32 v8, 0")
    g("v_mov_b32 v12, v10"); g("v_mov_b32 v13, v11"); g("v_mov_b32 v14, v10"); g("v_mov_b32 v15, v11")
    g("v_cmp_eq_u32 vcc, 0, v1")
    g(f"s_and_saveexec_b64 s[{S_EX}:{S_EX+1}], vcc")
    g(f"buffer_store_dwordx4 v[12:15], v8, {sr('WS')}, s10 offen sc1")
    g(f"s_mov_b64 exec, s[{S_EX}:{S_EX+1}]")
    g.label(Lnoml)
    g.label(Lend)
    stamp(g, 4)
    store_stamps(g, 5)
    g("s_branch L_EXIT")

def build_w(g):
    g("s_setprio 2")
    g("v_lshlrev_b32 v31, 4, v1")
    g("v_lshlrev_b32 v30, 5, v3")
    g("v_lshl_add_u32 v30, v2, 4, v30")
    Lw0, Lw1, Lgu, Lnone, Ljoin = [g.newlabel(x) for x in ("W0", "W1", "GU", "NONE", "P1JOIN")]
    g(f"s_cmp_eq_u32 s{S_WAVE}, 0"); g(f"s_cbranch_scc1 {Lw0}")
    g(f"s_cmp_eq_u32 s{S_WAVE}, 1"); g(f"s_cbranch_scc1 {Lw1}")
    g(f"s_sub_u32 s6, s{S_WAVE}, 2")
    g(f"s_and_b32 s7, s{S_WG}, 1")
    g("s_sub_u32 s8, 5, s7")
    g("s_cmp_lt_u32 s6, s8")
    g(f"s_cbranch_scc1 {Lgu}")
    g(f"s_branch {Lnone}")
    g.label(Lw0); phase1(g, True, "wq"); g(f"s_branch {Ljoin}")
    g.label(Lw1); phase1(g, False, "wq"); g(f"s_branch {Ljoin}")
    g.label(Lgu); phase1(g, False, "gu"); g(f"s_branch {Ljoin}")
    g.label(Lnone); phase1(g, False, None)
    g.label(Ljoin)
    stamp(g, 0)
    Lq = g.newlabel("NOQ"); Lqg = g.newlabel("QG")
    g(f"s_cmp_lt_u32 s{S_WAVE}, 2"); g(f"s_cbranch_scc1 {Lqg}")
    g(f"s_cmp_lt_u32 s{S_WAVE}, 6"); g(f"s_cbranch_scc1 {Lq}")
    g.label(Lqg)
    g(f"s_sub_u32 s8, s{S_WAVE}, 4")
    g(f"s_cmp_lt_u32 s{S_WAVE}, 2")
    g(f"s_cselect_b32 s8, s{S_WAVE}, s8")
    g(f"s_lshl_b32 s6, s{S_G}, 4")
    g("s_lshl_b32 s7, s8, 2")
    g("s_add_u32 s6, s6, s7")
    g("s_lshl_b32 s6, s6, 10")
    g(f"s_add_u32 s6, s6, {QP}")
    poll_loads(g, [(48 + 4*k, 4, 31, "WS", "s6", 1024*k) for k in range(4)], 13, VT)
    stamp(g, 1)
    for r in range(4):
        g(f"v_add_f32 v{48+r}, v{48+r}, v{52+r}")
        g(f"v_add_f32 v{56+r}, v{56+r}, v{60+r}")
    for r in range(4):
        g(f"v_add_f32 v{48+r}, v{48+r}, v{56+r}")
    g("s_lshl_b32 s6, s8, 10")
    g("v_add_u32 v12, s6, v31")
    g(f"ds_write_b128 v12, v[48:51] offset:{L_QS}")
    lds_signal(g, FLG_Q1)
    lds_wait(g, FLG_Q1, 4)
    g("s_lshl_b32 s6, s8, 8")
    g("v_lshl_add_u32 v12, v1, 2, s6")
    for w in range(4):
        g(f"ds_read_b32 v{48+w}, v12 offset:{L_QS + w*1024}")
    g("s_waitcnt lgkmcnt(0)")
    g("v_add_f32 v48, v48, v49"); g("v_add_f32 v50, v50, v51"); g("v_add_f32 v48, v48, v50")
    g("v_cvt_pk_bf16_f32 v48, v48, v48")
    g("v_lshrrev_b32 v12, 1, v12")
    g(f"ds_write_b16 v12, v48 offset:{L_QB}")
    lds_signal(g, FLG_Q2)
    g.label(Lq)
    stamp(g, 2)
    Lp2d = g.newlabel("P2DOWN"); Lp2j = g.newlabel("P2JOIN"); Lred = g.newlabel("P2RED")
    g("v_lshrrev_b32 v6, 3, v3")
    g("v_lshl_add_u32 v6, v2, 1, v6")
    g("s_movk_i32 s6, 1152")
    g("v_mul_lo_u32 v6, v6, s6")
    g("v_and_b32 v12, 7, v3")
    g("v_lshl_add_u32 v6, v12, 4, v6")
    g(f"s_cmp_ge_u32 s{S_WAVE}, 5"); g(f"s_cbranch_scc1 {Lred}")
    g(f"s_cmp_ge_u32 s{S_WAVE}, 2"); g(f"s_cbranch_scc1 {Lp2d}")
    g(f"s_lshl_b32 s6, s{S_WG}, 4")
    g(f"s_lshl_b32 s7, s{S_WAVE}, 3")
    g("s_add_u32 s6, s6, s7")
    g("s_mul_i32 s6, s6, 1152")
    for cb in range(9):
        g(f"buffer_load_dwordx4 {vq(T2 + 4*cb)}, v6, {sr('WO')}, s6 offen offset:{cb*128} nt")
    wo_task(g)
    stamp(g, 3)
    g(f"s_branch {Lp2j}")
    g.label(Lp2d)
    down_task(g, Lp2j)
    stamp(g, 3)
    g(f"s_branch {Lp2j}")
    g.label(Lred)
    g(f"s_and_b32 s9, s{S_WG}, 3")
    g("s_cmp_eq_u32 s9, 0")
    L3 = g.newlabel("RED3"); Lr2 = g.newlabel("REDJ")
    g(f"s_cbranch_scc1 {L3}")
    lds_wait(g, FLG_DR, 2)
    red_publish(g, L_DR, 4, 32)
    g(f"s_branch {Lr2}")
    g.label(L3)
    lds_wait(g, FLG_DR, 3)
    red_publish(g, L_DR, 6, 32)
    g.label(Lr2)
    stamp(g, 3)
    lds_wait(g, FLG_SR, 2)
    stamp(g, 4)
    red_publish(g, L_SR, 4, 0)
    g.label(Lp2j)
    stamp(g, 5)
    Lfin = g.newlabel("NOFIN")
    g(f"s_cmp_ge_u32 s{S_WG}, 72")
    g(f"s_cbranch_scc1 {Lfin}")
    final(g)
    g.label(Lfin)
    stamp(g, 6)
    store_stamps(g, 12)
    g("s_branch L_EXIT")

def phase1(g, is_w0, task):
    nl = 0
    if is_w0:
        g.srd("X")
        g(f"buffer_load_dwordx4 v[48:51], v31, {sr('X')}, 0 offen")
        g(f"buffer_load_dwordx4 v[52:55], v31, {sr('X')}, 0 offen offset:1024")
    if task == "wq":
        g.srd("WQ")
        g("v_lshlrev_b32 v4, 13, v2")
        g("v_lshl_add_u32 v4, v3, 4, v4")
        g(f"s_mul_i32 s6, s{S_C}, {36*8192}")
        g(f"s_lshl_b32 s7, s{S_G}, 1")
        g(f"s_add_u32 s7, s7, s{S_WAVE}")
        g("s_lshl_b32 s7, s7, 8")
        g("s_add_u32 s6, s6, s7")
        for u in range(9):
            g(f"buffer_load_dwordx4 {vq(T1 + 4*u)}, v4, {sr('WQ')}, s6 offen nt")
            if u < 8: g(f"s_add_u32 s6, s6, {4*8192}")
        nl += 9
        g(f"s_mul_i32 s9, s{S_C}, 144")
    elif task == "gu":
        g("s_mul_i32 s7, s7, 5")
        g("s_add_u32 s6, s6, s7")
        g(f"s_lshr_b32 s7, s{S_WG}, 1")
        g("s_and_b32 s7, s7, 3")
        g("s_mul_i32 s7, s7, 9")
        g("s_add_u32 s10, s6, s7")
        g.srd("WG"); g.srd("WU")
        g("s_movk_i32 s6, 9216")
        g("v_mul_lo_u32 v5, v2, s6")
        g("v_lshl_add_u32 v5, v3, 4, v5")
        g(f"s_mul_i32 s6, s{S_G}, {36*9216}")
        g("s_lshl_b32 s7, s10, 8")
        g("s_add_u32 s6, s6, s7")
        Lup = g.newlabel("UP"); Lj = g.newlabel("GUJ")
        g(f"s_bitcmp1_b32 s{S_WG}, 3")
        g(f"s_cbranch_scc1 {Lup}")
        for name, lab in (("WG", None), ("WU", Lup)):
            if lab: g.label(lab)
            for u in range(9):
                g(f"buffer_load_dwordx4 {vq(T1 + 4*u)}, v5, {sr(name)}, s6 offen nt")
                if u < 8: g(f"s_add_u32 s6, s6, {4*9216}")
            if name == "WG": g(f"s_branch {Lj}")
        g.label(Lj)
        nl += 9
        g(f"s_mul_i32 s9, s{S_G}, 144")
    if is_w0:
        g("v_mov_b32 v8, 0"); g("v_mov_b32 v9, 0"); g("v_mov_b32 v10, 0"); g("v_mov_b32 v11, 0")
        g(f"v_mov_b32 v12, {L_FLG}")
        g("ds_write_b128 v12, v[8:11]")
        g("ds_write_b128 v12, v[8:11] offset:16")
        g("s_waitcnt lgkmcnt(0)")
    else:
        g.srd("X")
    g.srd("WO"); g.srd("WD"); g.srd("OUT")
    g("s_barrier")
    stamp(g, 11)
    if is_w0:
        g(f"s_waitcnt vmcnt({nl})")
        stamp(g, 7)
        g("v_mov_b32 v8, 0"); g("v_mov_b32 v9, 0")
        for k in range(8):
            r = 48 + k
            g(f"v_lshlrev_b32 v10, 16, v{r}")
            g(f"v_and_b32 v11, 0xffff0000, v{r}")
            g("v_add_f32 v8, v8, v10")
            g("v_fmac_f32 v9, v10, v10")
            g("v_add_f32 v8, v8, v11")
            g("v_fmac_f32 v9, v11, v11")
        allreduce64(g, 8, 10)
        allreduce64(g, 9, 10)
        inv = hex(f2u(1.0 / 576.0))
        g(f"v_mul_f32 v8, {inv}, v8")
        g(f"v_mul_f32 v9, {inv}, v9")
        g("v_fma_f32 v9, -v8, v8, v9")
        rnd_bf16(g, 8, 10)
        rnd_bf16(g, 9, 10)
        g(f"v_add_f32 v9, {hex(f2u(1e-5))}, v9")
        rnd_bf16(g, 9, 10)
        g("v_sqrt_f32 v9, v9")
        g.nop(1)
        rnd_bf16(g, 9, 10)
        g("v_rcp_f32 v9, v9")
        g.nop(1)
        for k in range(8):
            r = 48 + k
            lo, hi = 92 + 2*k, 93 + 2*k
            g(f"v_lshlrev_b32 v{lo}, 16, v{r}")
            g(f"v_and_b32 v{hi}, 0xffff0000, v{r}")
            g(f"v_sub_f32 v{lo}, v{lo}, v8")
            g(f"v_sub_f32 v{hi}, v{hi}, v8")
            g(f"v_cvt_pk_bf16_f32 v10, v{lo}, v{hi}")
            g(f"v_lshlrev_b32 v{lo}, 16, v10")
            g(f"v_and_b32 v{hi}, 0xffff0000, v10")
            g(f"v_mul_f32 v{lo}, v{lo}, v9")
            g(f"v_mul_f32 v{hi}, v{hi}, v9")
            g(f"v_cvt_pk_bf16_f32 v{lo}, v{lo}, v{lo}")
            g(f"v_cvt_pk_bf16_f32 v{hi}, v{hi}, v{hi}")
        g("v_lshlrev_b32 v10, 5, v1")
        g(f"ds_write_b128 v10, v[92:95] offset:{L_XN}")
        g(f"ds_write_b128 v10, v[96:99] offset:{L_XN+16}")
        g("v_cmp_gt_u32 vcc, 8, v1")
        g.nop(2)
        g(f"s_and_saveexec_b64 s[{S_EX}:{S_EX+1}], vcc")
        g(f"ds_write_b128 v10, v[100:103] offset:{L_XN+2048}")
        g(f"ds_write_b128 v10, v[104:107] offset:{L_XN+2048+16}")
        g(f"s_mov_b64 exec, s[{S_EX}:{S_EX+1}]")
        lds_signal(g, FLG_LN)
    if task is None:
        g("s_waitcnt lgkmcnt(0)")
        tag_regs(g, VM, VT)
        return
    make_masks(g, 1, MBW, 8, 9)
    if not is_w0:
        lds_wait(g, FLG_LN, 1)
    g("v_lshl_add_u32 v10, v2, 2, s9")
    for u in range(9):
        g(f"ds_read_b32 v{XX[u]}, v10 offset:{L_XN + 16*u}")
    g("s_waitcnt lgkmcnt(0)")
    tag_regs(g, VM, VT)
    stamp(g, 8)
    g("s_waitcnt vmcnt(0)")
    stamp(g, 9)
    gemv_chain(g, XX, T1, D1, MBW, ASET)
    if task == "wq":
        g(f"s_lshl_b32 s6, s{S_WG}, 10")
        g(f"s_lshl_b32 s7, s{S_WAVE}, 9")
        g("s_add_u32 s6, s6, s7")
        g(f"s_add_u32 s6, s6, {QP}")
    else:
        g(f"s_lshr_b32 s6, s{S_WG}, 3")
        g("s_and_b32 s6, s6, 1")
        g("s_lshl_b32 s6, s6, 4")
        g(f"s_add_u32 s6, s6, s{S_G}")
        g("s_mul_i32 s6, s6, 36")
        g("s_add_u32 s6, s6, s10")
        g("s_lshl_b32 s6, s6, 9")
        g(f"s_add_u32 s6, s6, {GUP}")
    g("v_cmp_gt_u32 vcc, 32, v1")
    g.nop(6)
    add_tag(g, range(D1, D1 + 4), VM, VT)
    g(f"s_and_saveexec_b64 s[{S_EX}:{S_EX+1}], vcc")
    g(f"buffer_store_dwordx4 {vq(D1)}, v30, {sr('WS')}, s6 offen sc1")
    g(f"s_mov_b64 exec, s[{S_EX}:{S_EX+1}]")

def operand_from_x8(g):
    g(f"s_lshl_b32 s6, s{S_WAVE}, 5")
    g(f"s_add_u32 s6, s6, {L_HX}")
    g("v_and_b32 v12, 1, v1")
    g("v_lshl_add_u32 v12, v12, 4, s6")
    g("v_cmp_gt_u32 vcc, 2, v1")
    g.nop(2)
    g(f"s_and_saveexec_b64 s[{S_EX}:{S_EX+1}], vcc")
    g("ds_write_b128 v12, v[8:11]")
    g(f"s_mov_b64 exec, s[{S_EX}:{S_EX+1}]")
    g("v_lshrrev_b32 v12, 3, v3")
    g("v_lshl_add_u32 v12, v2, 1, v12")
    g("v_lshl_add_u32 v12, v12, 2, s6")
    g("ds_read_b32 v16, v12")
    g("s_waitcnt lgkmcnt(0)")
    g("v_cvt_pk_bf16_f32 v16, v16, v16")

def nine_mfma(g, red_base, wsub_sreg, flag):
    make_masks(g, 1, MBW, 12, 13)
    for r in range(4):
        g(f"v_and_b32 v{ASET[0]+r}, v16, v{MBW+r}")
    g("s_waitcnt vmcnt(0)")
    g.nop(2)
    for cb in range(9):
        mfma(g, T1 + 4*cb, ASET[0], T2 + 4*cb, None)
    g("v_lshrrev_b32 v12, 3, v3")
    g("s_movk_i32 s7, 2304")
    g("v_mul_lo_u32 v13, v12, s7")
    g("v_and_b32 v14, 7, v3")
    g("v_lshl_add_u32 v13, v14, 5, v13")
    g("v_and_b32 v14, 1, v2")
    g("v_lshl_add_u32 v13, v14, 4, v13")
    g(f"s_mul_i32 s7, {wsub_sreg}, 4608")
    g(f"s_add_u32 s7, s7, {red_base}")
    g("v_add_u32 v13, s7, v13")
    g("v_lshrrev_b32 v14, 1, v2")
    g("v_cmp_eq_u32 vcc, v12, v14")
    g.nop(2)
    g(f"s_and_saveexec_b64 s[{S_EX}:{S_EX+1}], vcc")
    for cb in range(9):
        g(f"ds_write_b128 v13, {vq(T1 + 4*cb)} offset:{cb*256}")
    g(f"s_mov_b64 exec, s[{S_EX}:{S_EX+1}]")
    lds_signal(g, flag)

def down_task(g, Lskip):
    g(f"s_and_b32 s9, s{S_WG}, 3")
    g("s_lshl_b32 s10, s9, 1")
    g("s_add_u32 s10, s10, 1")
    g("s_cmp_eq_u32 s9, 0")
    g("s_cselect_b32 s10, 0, s10")
    g("s_cselect_b32 s11, 3, 2")
    g(f"s_sub_u32 s8, s{S_WAVE}, 2")
    g("s_cmp_ge_u32 s8, s11")
    g(f"s_cbranch_scc1 {Lskip}")
    g(f"s_lshr_b32 s9, s{S_WG}, 2")
    g("s_mul_i32 s9, s9, 9")
    g("s_add_u32 s9, s9, s10")
    g("s_add_u32 s9, s9, s8")
    g("v_lshrrev_b32 v8, 5, v1")
    g("v_lshlrev_b32 v8, 4, v8")
    g("v_bfe_u32 v9, v1, 1, 4")
    g("v_add_u32 v8, v8, v9")
    g("s_movk_i32 s10, 18432")
    g("v_mul_lo_u32 v8, v8, s10")
    g("v_and_b32 v9, 1, v1")
    g("v_lshl_add_u32 v15, v9, 4, v8")
    g("s_lshl_b32 s10, s9, 5")
    g(f"s_add_u32 s10, s10, {GUP}")
    poll_loads(g, [(8, 4, 15, "WS", "s10", 0)], 13, VT)
    stamp(g, 1)
    g("s_mul_i32 s6, s9, 9216")
    for cb in range(9):
        g(f"buffer_load_dwordx4 {vq(T2 + 4*cb)}, v6, {sr('WD')}, s6 offen offset:{cb*128} nt")
    for r in range(4):
        reduce_bits1to4(g, 8 + r, 12, "v_add_f32")
    for r in range(4):
        rnd_bf16(g, 8 + r, 12)
    for r in range(4):
        g(f"v_mov_b32 v{48+r}, v{8+r}")
    g.nop(2)
    for r in range(4):
        g(f"v_permlane32_swap_b32 v{8+r}, v{48+r}")
    g.nop(1)
    for r in range(4):
        silu(g, 8 + r, 12)
        rnd_bf16(g, 8 + r, 12)
        g(f"v_mul_f32 v{8+r}, v{8+r}, v{48+r}")
        rnd_bf16(g, 8 + r, 12)
    operand_from_x8(g)
    nine_mfma(g, L_DR, "s8", FLG_DR)

def wo_task(g):
    g("v_bfe_u32 v12, v1, 1, 4")
    g("v_and_b32 v13, 1, v1")
    g("v_lshlrev_b32 v14, 10, v12")
    g("v_lshl_add_u32 v14, v13, 4, v14")
    g("v_lshlrev_b32 v15, 5, v12")
    g(f"s_lshl_b32 s6, s{S_G}, 14")
    g(f"s_lshr_b32 s7, s{S_C}, 3")
    g("s_lshl_b32 s9, s7, 9")
    g("s_add_u32 s6, s6, s9")
    g(f"s_and_b32 s9, s{S_C}, 7")
    g("s_lshl_b32 s9, s9, 6")
    g("s_add_u32 s6, s6, s9")
    g(f"s_mov_b32 s8, s{S_WAVE}")
    g("s_lshl_b32 s9, s8, 5")
    g("s_add_u32 s6, s6, s9")
    g(f"s_add_u32 s6, s6, {OPO}")
    g(f"s_lshl_b32 s9, s{S_G}, 9")
    g("s_lshl_b32 s7, s7, 4")
    g("s_add_u32 s9, s9, s7")
    g(f"s_add_u32 s9, s9, {OPML}")
    poll_loads(g, [(8, 4, 14, "WS", "s6", 0), (48, 4, 15, "WS", "s9", 0)], 12, VT)
    stamp(g, 4)
    g("v_mov_b32 v50, v48")
    reduce_bits1to4(g, 50, 12, "v_max_f32")
    g("v_sub_f32 v48, v48, v50")
    g(f"v_mul_f32 v48, s{S_LOG2E}, v48")
    g("v_exp_f32 v48, v48")
    g.nop(1)
    g("v_mul_f32 v49, v49, v48")
    reduce_bits1to4(g, 49, 12, "v_add_f32")
    for r in range(4):
        g(f"v_mul_f32 v{8+r}, v{8+r}, v48")
        reduce_bits1to4(g, 8 + r, 12, "v_add_f32")
    g("v_rcp_f32 v49, v49")
    g.nop(1)
    for r in range(4):
        g(f"v_mul_f32 v{8+r}, v{8+r}, v49")
        rnd_bf16(g, 8 + r, 12)
    operand_from_x8(g)
    nine_mfma(g, L_SR, "s8", FLG_SR)

def red_publish(g, red_base, nsum, dstoff):
    g(f"s_sub_u32 s6, s{S_WAVE}, 5")
    g("s_lshl_b32 s6, s6, 6")
    g("v_add_u32 v12, s6, v1")
    g("v_cmp_gt_u32 vcc, 144, v12")
    g.nop(2)
    g(f"s_and_saveexec_b64 s[{S_EX}:{S_EX+1}], vcc")
    Lsk = g.newlabel("REDSK")
    g(f"s_cbranch_execz {Lsk}")
    g("v_lshlrev_b32 v13, 4, v12")
    g(f"v_add_u32 v13, {red_base}, v13")
    for k in range(nsum):
        g(f"ds_read_b128 {vq(56 + 4*k)}, v13 offset:{k*2304}")
    g("s_waitcnt lgkmcnt(0)")
    for k in range(1, nsum):
        for r in range(4):
            g(f"v_add_f32 v{56+r}, v{56+r}, v{56+4*k+r}")
    g("v_lshrrev_b32 v13, 1, v12")
    g("v_lshlrev_b32 v13, 14, v13")
    g("v_and_b32 v14, 1, v12")
    g("v_lshl_add_u32 v13, v14, 4, v13")
    g(f"s_lshl_b32 s6, s{S_WG}, 6")
    g(f"s_add_u32 s6, s6, {PP + dstoff}")
    add_tag(g, range(56, 60), VM, VT)
    g(f"buffer_store_dwordx4 v[56:59], v13, {sr('WS')}, s6 offen sc1")
    g.label(Lsk)
    g(f"s_mov_b64 exec, s[{S_EX}:{S_EX+1}]")

def final(g):
    g(f"s_lshl_b32 s6, s{S_WAVE}, 6")
    g("v_add_u32 v12, s6, v1")
    g("v_lshrrev_b32 v14, 1, v12")
    g("v_lshlrev_b32 v14, 6, v14")
    g("v_and_b32 v13, 1, v12")
    g("v_lshl_add_u32 v14, v13, 4, v14")
    g(f"s_lshl_b32 s6, s{S_WG}, 14")
    g(f"s_add_u32 s6, s6, {PP}")
    poll_loads(g, [(48, 4, 14, "WS", "s6", 0), (52, 4, 14, "WS", "s6", 32)], 12, VT)
    for r in range(8):
        reduce_bits1to4(g, 48 + r, 12, "v_add_f32")
        rowswap(g, 48 + r, 12, "v_add_f32", do16=False, do32=True)
    g(f"s_lshl_b32 s6, s{S_WAVE}, 6")
    g(f"s_add_u32 s6, s6, {L_FR}")
    g("v_lshl_add_u32 v12, v1, 5, s6")
    g("v_cmp_gt_u32 vcc, 2, v1")
    g.nop(2)
    g(f"s_and_saveexec_b64 s[{S_EX}:{S_EX+1}], vcc")
    g("ds_write_b128 v12, v[48:51]")
    g("ds_write_b128 v12, v[52:55] offset:16")
    g(f"s_mov_b64 exec, s[{S_EX}:{S_EX+1}]")
    lds_signal(g, FLG_FR)
    Lf = g.newlabel("FINW0")
    g(f"s_cmp_lg_u32 s{S_WAVE}, 0")
    g(f"s_cbranch_scc1 {Lf}")
    g("v_lshlrev_b32 v10, 1, v1")
    g(f"s_lshl_b32 s8, s{S_WG}, 4")
    g(f"buffer_load_ushort v9, v10, {sr('X')}, s8 offen")
    lds_wait(g, FLG_FR, 8)
    g("v_lshrrev_b32 v12, 2, v1")
    g("v_lshlrev_b32 v12, 5, v12")
    g("v_and_b32 v13, 3, v1")
    g("v_lshl_add_u32 v12, v13, 2, v12")
    g(f"v_add_u32 v12, {L_FR}, v12")
    g("v_cmp_gt_u32 vcc, 8, v1")
    g.nop(2)
    g(f"s_and_saveexec_b64 s[{S_EX}:{S_EX+1}], vcc")
    for w in range(8):
        g(f"ds_read_b32 v{48+w}, v12 offset:{w*64}")
        g(f"ds_read_b32 v{56+w}, v12 offset:{w*64+16}")
    g("s_waitcnt vmcnt(0) lgkmcnt(0)")
    for w in range(1, 8):
        g(f"v_add_f32 v48, v48, v{48+w}")
        g(f"v_add_f32 v56, v56, v{56+w}")
    rnd_bf16(g, 48, 12)
    rnd_bf16(g, 56, 12)
    silu(g, 56, 12)
    rnd_bf16(g, 56, 12)
    g("v_mul_f32 v48, v48, v56")
    rnd_bf16(g, 48, 12)
    g("v_lshlrev_b32 v9, 16, v9")
    g("v_add_f32 v48, v48, v9")
    g("v_cvt_pk_bf16_f32 v48, v48, v48")
    g(f"buffer_store_short v48, v10, {sr('OUT')}, s8 offen")
    g(f"s_mov_b64 exec, s[{S_EX}:{S_EX+1}]")
    Le = g.newlabel("NOEPOCH")
    g(f"s_cmp_lg_u32 s{S_WG}, 0")
    g(f"s_cbranch_scc1 {Le}")
    g(f"s_add_u32 s6, s{S_EPOCH}, 1")
    g("v_mov_b32 v12, s6")
    g("v_mov_b32 v13, 0")
    g(f"s_mov_b32 s7, {EPOCH}")
    g("v_cmp_eq_u32 vcc, 0, v1")
    g(f"s_and_saveexec_b64 s[{S_EX}:{S_EX+1}], vcc")
    g(f"buffer_store_dword v12, v13, {sr('WS')}, s7 offen")
    g(f"s_mov_b64 exec, s[{S_EX}:{S_EX+1}]")
    g.label(Le)
    g.label(Lf)

def full(stamps=False, vgpr=128):
    g = build(stamps)
    return HEADER + f"""; @launch grid=(256,1,1) block=(1024,1,1) lds={LDS_BYTES}
.amdgcn_target "amdgcn-amd-amdhsa--gfx950"
.text
.globl {KNAME}
.p2align 8
.type {KNAME},@function
{KNAME}:
{g.text()}
  s_endpgm
.section .rodata,"a"
.p2align 6
.amdhsa_kernel {KNAME}
  .amdhsa_next_free_vgpr {vgpr}
  .amdhsa_next_free_sgpr 102
  .amdhsa_accum_offset {vgpr}
  .amdhsa_group_segment_fixed_size 0
  .amdhsa_kernarg_size 96
  .amdhsa_user_sgpr_count 2
  .amdhsa_user_sgpr_kernarg_segment_ptr 1
  .amdhsa_system_sgpr_workgroup_id_x 1
.end_amdhsa_kernel
"""

if __name__ == "__main__":
    out = sys.argv[1] if len(sys.argv) > 1 else "k3.s"
    st = len(sys.argv) > 2 and sys.argv[2] == "stamps"
    open(out, "w").write(full(st))
    print("wrote", out)
```

```python
from gen2 import *
import gen2

QP   = 0x000000
GUP  = 0x040000
OPO  = 0x0D0000
OPML = 0x110000
PP   = 0x120000
EPOCH = 0x250000
L_QS = 0
L_QB = 8192
L_HX = 8704
L_ML = 8960
L_OW = 9216
L_DR = 17408
L_SR = 35840
L_FR = 45056
L_FLG = 45568
L_XN = 45632
LDS_BYTES = 45632 + 2304
gen2.L_FLG = L_FLG

MBW = 25
FLG_ISS = 7
L_XS = L_XN + 2048
KVDEPTH = 0
XX = list(range(16, 25))
ASET = [32, 36]
D1 = 40
T1, T2 = 56, 92
VM, VT = 29, 7

def build(stamps=False):
    g = G(stamps)
    g(f"s_cmp_ge_u32 s{S_WG}, 256")
    g("s_cbranch_scc1 L_EXIT")
    if stamps: g("s_memrealtime s[94:95]")
    g("s_load_dwordx16 s[16:31], s[0:1], 0")
    g("s_load_dwordx8 s[32:39], s[0:1], 64")
    g("v_lshrrev_b32 v2, 6, v0")
    g("v_and_b32 v1, 63, v0")
    g(f"s_lshr_b32 s{S_G}, s{S_WG}, 4")
    g(f"s_and_b32 s{S_C}, s{S_WG}, 15")
    g(f"v_readfirstlane_b32 s{S_WAVE}, v2")
    g(f"s_mov_b32 s{S_SCALE}, {hex(f2u(128 ** -0.5))}")
    g(f"s_mov_b32 s{S_LOG2E}, {hex(f2u(1.4426950408889634))}")
    g("v_lshrrev_b32 v2, 4, v1")
    g("v_and_b32 v3, 15, v1")
    g("s_waitcnt lgkmcnt(0)")
    g(f"s_add_u32 s98, s{PTR['WS']}, {EPOCH}")
    g(f"s_addc_u32 s99, s{PTR['WS']+1}, 0")
    g(f"s_load_dword s{S_EPOCH}, s[98:99], 0")
    g.srd("WS")
    Lz = g.newlabel("ZF")
    g(f"s_cmp_lg_u32 s{S_WAVE}, 0")
    g(f"s_cbranch_scc1 {Lz}")
    g("v_mov_b32 v8, 0"); g("v_mov_b32 v9, 0"); g("v_mov_b32 v10, 0"); g("v_mov_b32 v11, 0")
    g(f"v_mov_b32 v12, {L_FLG}")
    g("ds_write_b128 v12, v[8:11]")
    g("ds_write_b128 v12, v[8:11] offset:16")
    g("s_waitcnt lgkmcnt(0)")
    g.label(Lz)
    g("s_barrier")
    g(f"s_cmp_ge_u32 s{S_WAVE}, 8")
    g("s_cbranch_scc1 L_AWAVE")
    build_w(g)
    build_a(g)
    g.label("L_EXIT")
    return g

def build_a(g):
    g.label("L_AWAVE")
    g.srd("K"); g.srd("V")
    g(f"s_sub_u32 s6, s{S_WAVE}, 8")
    g(f"s_lshl_b32 s7, s{S_G}, 22")
    g(f"s_lshl_b32 s8, s{S_C}, 16")
    g("s_add_u32 s7, s7, s8")
    g("s_lshl_b32 s8, s6, 13")
    g("s_add_u32 s7, s7, s8")
    g("s_add_u32 s7, s7, 0x300000")
    g("s_add_u32 s8, s7, 4096")
    g("v_and_b32 v4, 3, v3")
    g("v_lshlrev_b32 v4, 2, v4")
    g("v_lshrrev_b32 v5, 2, v3")
    g("v_add_u32 v4, v4, v5")
    g("v_lshlrev_b32 v4, 8, v4")
    g("v_lshlrev_b32 v5, 4, v2")
    g("v_add_u32 v4, v4, v5")
    g("v_lshlrev_b32 v5, 4, v1")
    g(f"s_and_b32 s9, s{S_WG}, 7")
    g("v_and_b32 v8, 3, v3"); g("v_lshlrev_b32 v8, 2, v8"); g("v_lshrrev_b32 v9, 2, v3"); g("v_add_u32 v8, v8, v9")
    g("s_lshl_b32 s10, s9, 2")
    g("v_add_u32 v8, s10, v8")
    g("v_add_u32 v9, 16, v8")
    g("v_and_b32 v8, 31, v8"); g("v_and_b32 v9, 31, v9")
    g("v_lshlrev_b32 v10, 4, v2")
    g("v_lshl_add_u32 v4, v8, 8, v10")
    g("v_lshl_add_u32 v6, v9, 8, v10")
    lds_wait(g, FLG_ISS, 8)
    KB, VB = 32, 64
    nissued = 0
    def throttle():
        nonlocal nissued
        if KVDEPTH and nissued >= KVDEPTH:
            g(f"s_waitcnt vmcnt({KVDEPTH-1})")
        nissued += 1
    for t in range(2):
        for s in range(4):
            throttle()
            g(f"buffer_load_dwordx4 {vq(KB + (t*4+s)*4)}, v{4 if t == 0 else 6}, {sr('K')}, s7 offen offset:{s*64} nt")
    for n in range(8):
        throttle()
        g(f"s_add_u32 s10, s9, {n}"); g("s_and_b32 s10, s10, 7"); g("s_lshl_b32 s10, s10, 10"); g("s_add_u32 s10, s10, s7")
        g(f"buffer_load_dwordx4 {vq(VB + 4*n)}, v5, {sr('V')}, s10 offen nt")
    lds_signal(g, FLG_Q1)
    MB = 120
    make_masks(g, 1, MB, 8, 9)
    g("v_lshrrev_b32 v6, 3, v1")
    g("v_and_b32 v6, 1, v6")
    g("v_lshlrev_b32 v6, 8, v6")
    g("v_lshl_add_u32 v6, v2, 4, v6")
    g(f"v_add_u32 v6, {L_QB}, v6")
    lds_wait(g, FLG_Q2, 4)
    QB_ = 96
    for s in range(4):
        g(f"ds_read_b128 {vq(QB_ + 4*s)}, v6 offset:{s*64}")
    g("s_waitcnt vmcnt(8) lgkmcnt(0)")
    stamp(g, 0)
    SB = 112
    for s in range(4):
        for t in range(2):
            mfma(g, SB + 4*t, KB + (t*4+s)*4, QB_ + 4*s, None if s == 0 else SB + 4*t)
    g.nop(8)
    for k in range(0, 8, 2):
        a, b = SB + k, SB + k + 1
        g(f"v_cvt_pk_bf16_f32 v8, v{a}, v{b}")
        g(f"v_lshlrev_b32 v{a}, 16, v8")
        g(f"v_and_b32 v{b}, 0xffff0000, v8")
        g(f"v_mul_f32 v{a}, s{S_SCALE}, v{a}")
        g(f"v_mul_f32 v{b}, s{S_SCALE}, v{b}")
        g(f"v_cvt_pk_bf16_f32 v8, v{a}, v{b}")
        g(f"v_lshlrev_b32 v{a}, 16, v8")
        g(f"v_and_b32 v{b}, 0xffff0000, v8")
    g(f"v_max3_f32 v12, v{SB}, v{SB+1}, v{SB+2}")
    g(f"v_max3_f32 v12, v12, v{SB+3}, v{SB+4}")
    g(f"v_max3_f32 v12, v12, v{SB+5}, v{SB+6}")
    g(f"v_max_f32 v12, v12, v{SB+7}")
    rowswap(g, 12, 9, "v_max_f32")
    g(f"v_mul_f32 v10, s{S_LOG2E}, v12")
    for k in range(8):
        g(f"v_fma_f32 v{SB+k}, v{SB+k}, s{S_LOG2E}, -v10")
    for k in range(8):
        g(f"v_exp_f32 v{SB+k}, v{SB+k}")
    g.nop(1)
    g(f"v_add_f32 v13, v{SB}, v{SB+1}")
    for k in range(2, 8):
        g(f"v_add_f32 v13, v13, v{SB+k}")
    rowswap(g, 13, 9, "v_add_f32")
    for k in range(8):
        g(f"v_cvt_pk_bf16_f32 v{SB+k}, v{SB+k}, v{SB+k}")
    g("s_waitcnt vmcnt(0)")
    stamp(g, 1)
    DO = 124
    aset = [16, 20]
    def ands(n):
        for r in range(4):
            g(f"v_and_b32 v{aset[n%2]+r}, v{SB+n}, v{MB+r}")
    ands(0)
    for n in range(8):
        if n + 1 < 8: ands(n + 1)
        else: g.nop(2)
        mfma(g, DO, aset[n % 2], VB + 4*n, None if n == 0 else DO)
    g("v_lshrrev_b32 v8, 1, v2")
    g("v_lshlrev_b32 v8, 9, v8")
    g("v_lshl_add_u32 v8, v3, 5, v8")
    g("v_and_b32 v9, 1, v2")
    g("v_lshl_add_u32 v8, v9, 4, v8")
    g("s_lshl_b32 s9, s6, 10")
    g(f"s_add_u32 s9, s9, {L_OW}")
    g("v_add_u32 v8, s9, v8")
    g("v_lshrrev_b32 v9, 3, v1")
    g("v_and_b32 v9, 1, v9")
    g("v_lshlrev_b32 v9, 3, v9")
    g("s_lshl_b32 s9, s6, 4")
    g(f"s_add_u32 s9, s9, {L_ML}")
    g("v_add_u32 v9, s9, v9")
    g("ds_write_b64 v9, v[12:13]")
    g.nop(4)
    g(f"ds_write_b128 v8, {vq(DO)}")
    lds_signal(g, FLG_ATT, 14, 15)
    stamp(g, 2)
    Lend = g.newlabel("AEND")
    g("s_cmp_ge_u32 s6, 4")
    g(f"s_cbranch_scc1 {Lend}")
    AVM, AVT = 28, 29
    tag_regs(g, AVM, AVT)
    g("s_lshr_b32 s9, s6, 1")
    g("s_lshl_b32 s10, s9, 3")
    g(f"s_add_u32 s10, s10, {L_ML}")
    g("v_mov_b32 v8, s10")
    g("s_lshl_b32 s10, s6, 8")
    g("v_lshl_add_u32 v7, v1, 2, s10")
    g(f"v_add_u32 v9, {L_OW}, v7")
    lds_wait(g, FLG_ATT, 8, 14, 15)
    stamp(g, 3)
    for w in range(8):
        g(f"ds_read_b64 v[{32+2*w}:{33+2*w}], v8 offset:{w*16}")
    for w in range(8):
        g(f"ds_read_b32 v{48+w}, v9 offset:{w*1024}")
    g("s_waitcnt lgkmcnt(0)")
    g("v_max3_f32 v10, v32, v34, v36")
    g("v_max3_f32 v10, v10, v38, v40")
    g("v_max3_f32 v10, v10, v42, v44")
    g("v_max_f32 v10, v10, v46")
    g(f"v_mul_f32 v11, s{S_LOG2E}, v10")
    for w in range(8):
        g(f"v_fma_f32 v{32+2*w}, v{32+2*w}, s{S_LOG2E}, -v11")
    for w in range(8):
        g(f"v_exp_f32 v{32+2*w}, v{32+2*w}")
    g.nop(1)
    g("v_mul_f32 v11, v32, v33")
    g("v_mul_f32 v12, v32, v48")
    for w in range(1, 8):
        g(f"v_fmac_f32 v11, v{32+2*w}, v{33+2*w}")
        g(f"v_fmac_f32 v12, v{32+2*w}, v{48+w}")
    add_tag(g, [10, 11, 12], AVM, AVT)
    g(f"s_lshl_b32 s10, s{S_WG}, 10")
    g(f"s_add_u32 s10, s10, {OPO}")
    g(f"buffer_store_dword v12, v7, {sr('WS')}, s10 offen sc1")
    g("s_and_b32 s11, s6, 1")
    g("s_cmp_eq_u32 s11, 0")
    Lnoml = g.newlabel("NOML")
    g(f"s_cbranch_scc0 {Lnoml}")
    g(f"s_lshl_b32 s10, s{S_WG}, 1")
    g("s_add_u32 s10, s10, s9")
    g("s_lshl_b32 s10, s10, 4")
    g(f"s_add_u32 s10, s10, {OPML}")
    g("v_mov_b32 v8, 0")
    g("v_mov_b32 v12, v10"); g("v_mov_b32 v13, v11"); g("v_mov_b32 v14, v10"); g("v_mov_b32 v15, v11")
    g("v_cmp_eq_u32 vcc, 0, v1")
    g(f"s_and_saveexec_b64 s[{S_EX}:{S_EX+1}], vcc")
    g(f"buffer_store_dwordx4 v[12:15], v8, {sr('WS')}, s10 offen sc1")
    g(f"s_mov_b64 exec, s[{S_EX}:{S_EX+1}]")
    g.label(Lnoml)
    g.label(Lend)
    stamp(g, 4)
    store_stamps(g, 5)
    g("s_branch L_EXIT")

def build_w(g):
    g("s_setprio 2")
    g("v_lshlrev_b32 v31, 4, v1")
    g("v_lshlrev_b32 v30, 5, v3")
    g("v_lshl_add_u32 v30, v2, 4, v30")
    Lw0, Lw1, Lgu, Lnone, Ljoin = [g.newlabel(x) for x in ("W0", "W1", "GU", "NONE", "P1JOIN")]
    g(f"s_cmp_eq_u32 s{S_WAVE}, 0"); g(f"s_cbranch_scc1 {Lw0}")
    g(f"s_cmp_eq_u32 s{S_WAVE}, 1"); g(f"s_cbranch_scc1 {Lw1}")
    g(f"s_sub_u32 s6, s{S_WAVE}, 2")
    g(f"s_and_b32 s7, s{S_WG}, 1")
    g("s_sub_u32 s8, 5, s7")
    g("s_cmp_lt_u32 s6, s8")
    g(f"s_cbranch_scc1 {Lgu}")
    g(f"s_branch {Lnone}")
    g.label(Lw0); phase1(g, True, "wq"); g(f"s_branch {Ljoin}")
    g.label(Lw1); phase1(g, False, "wq"); g(f"s_branch {Ljoin}")
    g.label(Lgu); phase1(g, False, "gu"); g(f"s_branch {Ljoin}")
    g.label(Lnone); phase1(g, False, None)
    g.label(Ljoin)
    stamp(g, 0)
    Lq = g.newlabel("NOQ"); Lqg = g.newlabel("QG")
    g(f"s_cmp_lt_u32 s{S_WAVE}, 2"); g(f"s_cbranch_scc1 {Lqg}")
    g(f"s_cmp_lt_u32 s{S_WAVE}, 6"); g(f"s_cbranch_scc1 {Lq}")
    g.label(Lqg)
    g(f"s_sub_u32 s8, s{S_WAVE}, 4")
    g(f"s_cmp_lt_u32 s{S_WAVE}, 2")
    g(f"s_cselect_b32 s8, s{S_WAVE}, s8")
    g("v_lshlrev_b32 v12, 10, v2")
    g("v_lshl_add_u32 v15, v3, 4, v12")
    g(f"s_lshl_b32 s6, s{S_G}, 14")
    g("s_lshl_b32 s7, s8, 8")
    g("s_add_u32 s6, s6, s7")
    g(f"s_add_u32 s6, s6, {QP}")
    g("s_add_u32 s7, s6, 4096"); g("s_add_u32 s9, s6, 8192"); g("s_add_u32 s10, s6, 12288")
    poll_loads(g, [(48, 4, 15, "WS", "s6", 0), (52, 4, 15, "WS", "s7", 0), (56, 4, 15, "WS", "s9", 0), (60, 4, 15, "WS", "s10", 0)], 13, VT)
    stamp(g, 1)
    for r in range(4):
        g(f"v_add_f32 v{48+r}, v{48+r}, v{52+r}")
        g(f"v_add_f32 v{56+r}, v{56+r}, v{60+r}")
    for r in range(4):
        g(f"v_add_f32 v{48+r}, v{48+r}, v{56+r}")
    for r in range(4):
        rowswap(g, 48 + r, 12, "v_add_f32")
    g("v_cvt_pk_bf16_f32 v48, v48, v49")
    g("v_cvt_pk_bf16_f32 v49, v50, v51")
    g("s_lshl_b32 s6, s8, 7")
    g("v_lshl_add_u32 v12, v3, 3, s6")
    g(f"ds_write_b64 v12, v[48:49] offset:{L_QB}")
    lds_signal(g, FLG_Q2)
    g.label(Lq)
    stamp(g, 2)
    Lp2d = g.newlabel("P2DOWN"); Lp2j = g.newlabel("P2JOIN"); Lred = g.newlabel("P2RED")
    g("v_lshrrev_b32 v6, 3, v3")
    g("v_lshl_add_u32 v6, v2, 1, v6")
    g("s_movk_i32 s6, 1152")
    g("v_mul_lo_u32 v6, v6, s6")
    g("v_and_b32 v12, 7, v3")
    g("v_lshl_add_u32 v6, v12, 4, v6")
    g(f"s_cmp_ge_u32 s{S_WAVE}, 5"); g(f"s_cbranch_scc1 {Lred}")
    g(f"s_cmp_ge_u32 s{S_WAVE}, 2"); g(f"s_cbranch_scc1 {Lp2d}")
    g(f"s_lshl_b32 s6, s{S_WG}, 4")
    g(f"s_lshl_b32 s7, s{S_WAVE}, 3")
    g("s_add_u32 s6, s6, s7")
    g("s_mul_i32 s6, s6, 1152")
    lds_wait(g, FLG_Q1, 8)
    for cb in range(9):
        g(f"buffer_load_dwordx4 {vq(T2 + 4*cb)}, v6, {sr('WO')}, s6 offen offset:{cb*128} nt")
    wo_task(g)
    stamp(g, 3)
    g(f"s_branch {Lp2j}")
    g.label(Lp2d)
    down_task(g, Lp2j)
    stamp(g, 3)
    g(f"s_branch {Lp2j}")
    g.label(Lred)
    g(f"s_and_b32 s9, s{S_WG}, 3")
    g("s_cmp_eq_u32 s9, 0")
    L3 = g.newlabel("RED3"); Lr2 = g.newlabel("REDJ")
    g(f"s_cbranch_scc1 {L3}")
    lds_wait(g, FLG_DR, 2)
    red_publish(g, L_DR, 4, 32)
    g(f"s_branch {Lr2}")
    g.label(L3)
    lds_wait(g, FLG_DR, 3)
    red_publish(g, L_DR, 6, 32)
    g.label(Lr2)
    stamp(g, 3)
    lds_wait(g, FLG_SR, 2)
    stamp(g, 4)
    red_publish(g, L_SR, 4, 0)
    g.label(Lp2j)
    stamp(g, 5)
    Lfin = g.newlabel("NOFIN")
    g(f"s_cmp_ge_u32 s{S_WG}, 72")
    g(f"s_cbranch_scc1 {Lfin}")
    final(g)
    g.label(Lfin)
    stamp(g, 6)
    store_stamps(g, 12)
    g("s_branch L_EXIT")

def phase1(g, is_w0, task):
    nl = 0
    if is_w0:
        g.srd("X")
        g(f"buffer_load_dwordx4 v[48:51], v31, {sr('X')}, 0 offen")
        g(f"buffer_load_dwordx4 v[52:55], v31, {sr('X')}, 0 offen offset:1024")
    if task == "wq":
        g.srd("WQ")
        g("v_lshlrev_b32 v4, 13, v2")
        g("v_lshl_add_u32 v4, v3, 4, v4")
        g(f"s_mul_i32 s6, s{S_C}, {36*8192}")
        g(f"s_lshl_b32 s7, s{S_G}, 1")
        g(f"s_add_u32 s7, s7, s{S_WAVE}")
        g("s_lshl_b32 s7, s7, 8")
        g("s_add_u32 s6, s6, s7")
        for u in range(9):
            g(f"buffer_load_dwordx4 {vq(T1 + 4*u)}, v4, {sr('WQ')}, s6 offen nt")
            if u < 8: g(f"s_add_u32 s6, s6, {4*8192}")
        nl += 9
        g(f"s_mul_i32 s9, s{S_C}, 144")
    elif task == "gu":
        g("s_mul_i32 s7, s7, 5")
        g("s_add_u32 s6, s6, s7")
        g(f"s_lshr_b32 s7, s{S_WG}, 1")
        g("s_and_b32 s7, s7, 3")
        g("s_mul_i32 s7, s7, 9")
        g("s_add_u32 s10, s6, s7")
        g.srd("WG"); g.srd("WU")
        g("s_movk_i32 s6, 9216")
        g("v_mul_lo_u32 v5, v2, s6")
        g("v_lshl_add_u32 v5, v3, 4, v5")
        g(f"s_mul_i32 s6, s{S_G}, {36*9216}")
        g("s_lshl_b32 s7, s10, 8")
        g("s_add_u32 s6, s6, s7")
        Lup = g.newlabel("UP"); Lj = g.newlabel("GUJ")
        g(f"s_bitcmp1_b32 s{S_WG}, 3")
        g(f"s_cbranch_scc1 {Lup}")
        for name, lab in (("WG", None), ("WU", Lup)):
            if lab: g.label(lab)
            for u in range(9):
                g(f"buffer_load_dwordx4 {vq(T1 + 4*u)}, v5, {sr(name)}, s6 offen nt")
                if u < 8: g(f"s_add_u32 s6, s6, {4*9216}")
            if name == "WG": g(f"s_branch {Lj}")
        g.label(Lj)
        nl += 9
        g(f"s_mul_i32 s9, s{S_G}, 144")
    lds_signal(g, FLG_ISS)
    if not is_w0:
        g.srd("X")
    g.srd("WO"); g.srd("WD"); g.srd("OUT")
    stamp(g, 11)
    if is_w0:
        g(f"s_waitcnt vmcnt({nl})")
        stamp(g, 7)
        g(f"ds_write_b128 v31, v[48:51] offset:{L_XN}")
        g(f"ds_write_b128 v31, v[52:55] offset:{L_XN+1024}")
        g("v_mov_b32 v8, 0"); g("v_mov_b32 v9, 0")
        for k in range(8):
            r = 48 + k
            g(f"v_lshlrev_b32 v10, 16, v{r}")
            g(f"v_and_b32 v11, 0xffff0000, v{r}")
            g("v_add_f32 v8, v8, v10")
            g("v_fmac_f32 v9, v10, v10")
            g("v_add_f32 v8, v8, v11")
            g("v_fmac_f32 v9, v11, v11")
        allreduce64(g, 8, 10)
        allreduce64(g, 9, 10)
        inv = hex(f2u(1.0 / 576.0))
        g(f"v_mul_f32 v8, {inv}, v8")
        g(f"v_mul_f32 v9, {inv}, v9")
        g("v_fma_f32 v9, -v8, v8, v9")
        rnd_bf16(g, 8, 10)
        rnd_bf16(g, 9, 10)
        g(f"v_add_f32 v9, {hex(f2u(1e-5))}, v9")
        rnd_bf16(g, 9, 10)
        g("v_sqrt_f32 v9, v9")
        g.nop(1)
        rnd_bf16(g, 9, 10)
        g("v_rcp_f32 v9, v9")
        g.nop(1)
        g(f"v_mov_b32 v12, {L_XS}")
        g("ds_write_b64 v12, v[8:9]")
        lds_signal(g, FLG_LN)
    if task is None:
        g("s_waitcnt lgkmcnt(0)")
        tag_regs(g, VM, VT)
        return
    make_masks(g, 1, MBW, 8, 9)
    if not is_w0:
        lds_wait(g, FLG_LN, 1)
    g("s_lshr_b32 s9, s9, 1")
    g("v_lshl_add_u32 v10, v2, 1, s9")
    for u in range(9):
        g(f"ds_read_u16 v{XX[u]}, v10 offset:{L_XN + 8*u}")
    g(f"v_mov_b32 v12, {L_XS}")
    g("ds_read_b64 v[8:9], v12")
    g("s_waitcnt lgkmcnt(0)")
    tag_regs(g, VM, VT)
    for u in range(9):
        x = XX[u]
        g(f"v_lshlrev_b32 v{x}, 16, v{x}")
        g(f"v_sub_f32 v{x}, v{x}, v8")
        g(f"v_cvt_pk_bf16_f32 v{x}, v{x}, v{x}")
        g(f"v_lshlrev_b32 v{x}, 16, v{x}")
        g(f"v_mul_f32 v{x}, v{x}, v9")
        g(f"v_cvt_pk_bf16_f32 v{x}, v{x}, v{x}")
    stamp(g, 8)
    g("s_waitcnt vmcnt(0)")
    stamp(g, 9)
    gemv_chain(g, XX, T1, D1, MBW, ASET)
    if task == "wq":
        g(f"s_lshl_b32 s6, s{S_WG}, 10")
        g(f"s_lshl_b32 s7, s{S_WAVE}, 9")
        g("s_add_u32 s6, s6, s7")
        g(f"s_add_u32 s6, s6, {QP}")
    else:
        g(f"s_lshr_b32 s6, s{S_WG}, 3")
        g("s_and_b32 s6, s6, 1")
        g("s_lshl_b32 s6, s6, 4")
        g(f"s_add_u32 s6, s6, s{S_G}")
        g("s_mul_i32 s6, s6, 36")
        g("s_add_u32 s6, s6, s10")
        g("s_lshl_b32 s6, s6, 9")
        g(f"s_add_u32 s6, s6, {GUP}")
    g("v_cmp_gt_u32 vcc, 32, v1")
    g.nop(6)
    add_tag(g, range(D1, D1 + 4), VM, VT)
    g(f"s_and_saveexec_b64 s[{S_EX}:{S_EX+1}], vcc")
    g(f"buffer_store_dwordx4 {vq(D1)}, v30, {sr('WS')}, s6 offen sc1")
    g(f"s_mov_b64 exec, s[{S_EX}:{S_EX+1}]")

def operand_from_x8(g):
    g(f"s_lshl_b32 s6, s{S_WAVE}, 5")
    g(f"s_add_u32 s6, s6, {L_HX}")
    g("v_and_b32 v12, 1, v1")
    g("v_lshl_add_u32 v12, v12, 4, s6")
    g("v_cmp_gt_u32 vcc, 2, v1")
    g.nop(2)
    g(f"s_and_saveexec_b64 s[{S_EX}:{S_EX+1}], vcc")
    g("ds_write_b128 v12, v[8:11]")
    g(f"s_mov_b64 exec, s[{S_EX}:{S_EX+1}]")
    g("v_lshrrev_b32 v12, 3, v3")
    g("v_lshl_add_u32 v12, v2, 1, v12")
    g("v_lshl_add_u32 v12, v12, 2, s6")
    g("ds_read_b32 v16, v12")
    g("s_waitcnt lgkmcnt(0)")
    g("v_cvt_pk_bf16_f32 v16, v16, v16")

def nine_mfma(g, red_base, wsub_sreg, flag):
    make_masks(g, 1, MBW, 12, 13)
    for r in range(4):
        g(f"v_and_b32 v{ASET[0]+r}, v16, v{MBW+r}")
    g("s_waitcnt vmcnt(0)")
    g.nop(2)
    for cb in range(9):
        mfma(g, T1 + 4*cb, ASET[0], T2 + 4*cb, None)
    g("v_lshrrev_b32 v12, 3, v3")
    g("s_movk_i32 s7, 2304")
    g("v_mul_lo_u32 v13, v12, s7")
    g("v_and_b32 v14, 7, v3")
    g("v_lshl_add_u32 v13, v14, 5, v13")
    g("v_and_b32 v14, 1, v2")
    g("v_lshl_add_u32 v13, v14, 4, v13")
    g(f"s_mul_i32 s7, {wsub_sreg}, 4608")
    g(f"s_add_u32 s7, s7, {red_base}")
    g("v_add_u32 v13, s7, v13")
    g("v_lshrrev_b32 v14, 1, v2")
    g("v_cmp_eq_u32 vcc, v12, v14")
    g.nop(2)
    g(f"s_and_saveexec_b64 s[{S_EX}:{S_EX+1}], vcc")
    for cb in range(9):
        g(f"ds_write_b128 v13, {vq(T1 + 4*cb)} offset:{cb*256}")
    g(f"s_mov_b64 exec, s[{S_EX}:{S_EX+1}]")
    lds_signal(g, flag)

def down_task(g, Lskip):
    g(f"s_and_b32 s9, s{S_WG}, 3")
    g("s_lshl_b32 s10, s9, 1")
    g("s_add_u32 s10, s10, 1")
    g("s_cmp_eq_u32 s9, 0")
    g("s_cselect_b32 s10, 0, s10")
    g("s_cselect_b32 s11, 3, 2")
    g(f"s_sub_u32 s8, s{S_WAVE}, 2")
    g("s_cmp_ge_u32 s8, s11")
    g(f"s_cbranch_scc1 {Lskip}")
    g(f"s_lshr_b32 s9, s{S_WG}, 2")
    g("s_mul_i32 s9, s9, 9")
    g("s_add_u32 s9, s9, s10")
    g("s_add_u32 s9, s9, s8")
    g("v_lshrrev_b32 v8, 5, v1")
    g("v_lshlrev_b32 v8, 4, v8")
    g("v_bfe_u32 v9, v1, 1, 4")
    g("v_add_u32 v8, v8, v9")
    g("s_movk_i32 s10, 18432")
    g("v_mul_lo_u32 v8, v8, s10")
    g("v_and_b32 v9, 1, v1")
    g("v_lshl_add_u32 v15, v9, 4, v8")
    g("s_lshl_b32 s10, s9, 5")
    g(f"s_add_u32 s10, s10, {GUP}")
    poll_loads(g, [(8, 4, 15, "WS", "s10", 0)], 13, VT)
    stamp(g, 1)
    g("s_mul_i32 s6, s9, 9216")
    lds_wait(g, FLG_Q1, 8)
    for cb in range(9):
        g(f"buffer_load_dwordx4 {vq(T2 + 4*cb)}, v6, {sr('WD')}, s6 offen offset:{cb*128} nt")
    for r in range(4):
        reduce_bits1to4(g, 8 + r, 12, "v_add_f32")
    for r in range(4):
        rnd_bf16(g, 8 + r, 12)
    for r in range(4):
        g(f"v_mov_b32 v{48+r}, v{8+r}")
    g.nop(2)
    for r in range(4):
        g(f"v_permlane32_swap_b32 v{8+r}, v{48+r}")
    g.nop(1)
    for r in range(4):
        silu(g, 8 + r, 12)
        rnd_bf16(g, 8 + r, 12)
        g(f"v_mul_f32 v{8+r}, v{8+r}, v{48+r}")
        rnd_bf16(g, 8 + r, 12)
    operand_from_x8(g)
    nine_mfma(g, L_DR, "s8", FLG_DR)

def wo_task(g):
    g("v_bfe_u32 v12, v1, 1, 4")
    g("v_and_b32 v13, 1, v1")
    g("v_lshlrev_b32 v14, 10, v12")
    g("v_lshl_add_u32 v14, v13, 4, v14")
    g("v_lshlrev_b32 v15, 5, v12")
    g(f"s_lshl_b32 s6, s{S_G}, 14")
    g(f"s_lshr_b32 s7, s{S_C}, 3")
    g("s_lshl_b32 s9, s7, 9")
    g("s_add_u32 s6, s6, s9")
    g(f"s_and_b32 s9, s{S_C}, 7")
    g("s_lshl_b32 s9, s9, 6")
    g("s_add_u32 s6, s6, s9")
    g(f"s_mov_b32 s8, s{S_WAVE}")
    g("s_lshl_b32 s9, s8, 5")
    g("s_add_u32 s6, s6, s9")
    g(f"s_add_u32 s6, s6, {OPO}")
    g(f"s_lshl_b32 s9, s{S_G}, 9")
    g("s_lshl_b32 s7, s7, 4")
    g("s_add_u32 s9, s9, s7")
    g(f"s_add_u32 s9, s9, {OPML}")
    poll_loads(g, [(8, 4, 14, "WS", "s6", 0), (48, 4, 15, "WS", "s9", 0)], 12, VT)
    stamp(g, 4)
    g("v_mov_b32 v50, v48")
    reduce_bits1to4(g, 50, 12, "v_max_f32")
    g("v_sub_f32 v48, v48, v50")
    g(f"v_mul_f32 v48, s{S_LOG2E}, v48")
    g("v_exp_f32 v48, v48")
    g.nop(1)
    g("v_mul_f32 v49, v49, v48")
    reduce_bits1to4(g, 49, 12, "v_add_f32")
    for r in range(4):
        g(f"v_mul_f32 v{8+r}, v{8+r}, v48")
        reduce_bits1to4(g, 8 + r, 12, "v_add_f32")
    g("v_rcp_f32 v49, v49")
    g.nop(1)
    for r in range(4):
        g(f"v_mul_f32 v{8+r}, v{8+r}, v49")
        rnd_bf16(g, 8 + r, 12)
    operand_from_x8(g)
    nine_mfma(g, L_SR, "s8", FLG_SR)

def red_publish(g, red_base, nsum, dstoff):
    g(f"s_sub_u32 s6, s{S_WAVE}, 5")
    g("s_lshl_b32 s6, s6, 6")
    g("v_add_u32 v12, s6, v1")
    g("v_cmp_gt_u32 vcc, 144, v12")
    g.nop(2)
    g(f"s_and_saveexec_b64 s[{S_EX}:{S_EX+1}], vcc")
    Lsk = g.newlabel("REDSK")
    g(f"s_cbranch_execz {Lsk}")
    g("v_lshlrev_b32 v13, 4, v12")
    g(f"v_add_u32 v13, {red_base}, v13")
    for k in range(nsum):
        g(f"ds_read_b128 {vq(56 + 4*k)}, v13 offset:{k*2304}")
    g("s_waitcnt lgkmcnt(0)")
    for k in range(1, nsum):
        for r in range(4):
            g(f"v_add_f32 v{56+r}, v{56+r}, v{56+4*k+r}")
    g("v_lshrrev_b32 v13, 1, v12")
    g("v_lshlrev_b32 v13, 14, v13")
    g("v_and_b32 v14, 1, v12")
    g("v_lshl_add_u32 v13, v14, 4, v13")
    g(f"s_lshl_b32 s6, s{S_WG}, 6")
    g(f"s_add_u32 s6, s6, {PP + dstoff}")
    add_tag(g, range(56, 60), VM, VT)
    g(f"buffer_store_dwordx4 v[56:59], v13, {sr('WS')}, s6 offen sc1")
    g.label(Lsk)
    g(f"s_mov_b64 exec, s[{S_EX}:{S_EX+1}]")

def final(g):
    g(f"s_lshl_b32 s6, s{S_WAVE}, 6")
    g("v_add_u32 v12, s6, v1")
    g("v_lshrrev_b32 v14, 1, v12")
    g("v_lshlrev_b32 v14, 6, v14")
    g("v_and_b32 v13, 1, v12")
    g("v_lshl_add_u32 v14, v13, 4, v14")
    g(f"s_lshl_b32 s6, s{S_WG}, 14")
    g(f"s_add_u32 s6, s6, {PP}")
    poll_loads(g, [(48, 4, 14, "WS", "s6", 0), (52, 4, 14, "WS", "s6", 32)], 12, VT)
    for r in range(8):
        reduce_bits1to4(g, 48 + r, 12, "v_add_f32")
        rowswap(g, 48 + r, 12, "v_add_f32", do16=False, do32=True)
    g(f"s_lshl_b32 s6, s{S_WAVE}, 6")
    g(f"s_add_u32 s6, s6, {L_FR}")
    g("v_lshl_add_u32 v12, v1, 5, s6")
    g("v_cmp_gt_u32 vcc, 2, v1")
    g.nop(2)
    g(f"s_and_saveexec_b64 s[{S_EX}:{S_EX+1}], vcc")
    g("ds_write_b128 v12, v[48:51]")
    g("ds_write_b128 v12, v[52:55] offset:16")
    g(f"s_mov_b64 exec, s[{S_EX}:{S_EX+1}]")
    lds_signal(g, FLG_FR)
    Lf = g.newlabel("FINW0")
    g(f"s_cmp_lg_u32 s{S_WAVE}, 0")
    g(f"s_cbranch_scc1 {Lf}")
    g("v_lshlrev_b32 v10, 1, v1")
    g(f"s_lshl_b32 s8, s{S_WG}, 4")
    g(f"buffer_load_ushort v9, v10, {sr('X')}, s8 offen")
    lds_wait(g, FLG_FR, 8)
    g("v_lshrrev_b32 v12, 2, v1")
    g("v_lshlrev_b32 v12, 5, v12")
    g("v_and_b32 v13, 3, v1")
    g("v_lshl_add_u32 v12, v13, 2, v12")
    g(f"v_add_u32 v12, {L_FR}, v12")
    g("v_cmp_gt_u32 vcc, 8, v1")
    g.nop(2)
    g(f"s_and_saveexec_b64 s[{S_EX}:{S_EX+1}], vcc")
    for w in range(8):
        g(f"ds_read_b32 v{48+w}, v12 offset:{w*64}")
        g(f"ds_read_b32 v{56+w}, v12 offset:{w*64+16}")
    g("s_waitcnt vmcnt(0) lgkmcnt(0)")
    for w in range(1, 8):
        g(f"v_add_f32 v48, v48, v{48+w}")
        g(f"v_add_f32 v56, v56, v{56+w}")
    rnd_bf16(g, 48, 12)
    rnd_bf16(g, 56, 12)
    silu(g, 56, 12)
    rnd_bf16(g, 56, 12)
    g("v_mul_f32 v48, v48, v56")
    rnd_bf16(g, 48, 12)
    g("v_lshlrev_b32 v9, 16, v9")
    g("v_add_f32 v48, v48, v9")
    g("v_cvt_pk_bf16_f32 v48, v48, v48")
    g(f"buffer_store_short v48, v10, {sr('OUT')}, s8 offen")
    g(f"s_mov_b64 exec, s[{S_EX}:{S_EX+1}]")
    Le = g.newlabel("NOEPOCH")
    g(f"s_cmp_lg_u32 s{S_WG}, 0")
    g(f"s_cbranch_scc1 {Le}")
    g(f"s_add_u32 s6, s{S_EPOCH}, 1")
    g("v_mov_b32 v12, s6")
    g("v_mov_b32 v13, 0")
    g(f"s_mov_b32 s7, {EPOCH}")
    g("v_cmp_eq_u32 vcc, 0, v1")
    g(f"s_and_saveexec_b64 s[{S_EX}:{S_EX+1}], vcc")
    g(f"buffer_store_dword v12, v13, {sr('WS')}, s7 offen")
    g(f"s_mov_b64 exec, s[{S_EX}:{S_EX+1}]")
    g.label(Le)
    g.label(Lf)

def full(stamps=False, vgpr=128):
    g = build(stamps)
    return HEADER + f"""; @launch grid=(256,1,1) block=(1024,1,1) lds={LDS_BYTES}
.amdgcn_target "amdgcn-amd-amdhsa--gfx950"
.text
.globl {KNAME}
.p2align 8
.type {KNAME},@function
{KNAME}:
{g.text()}
  s_endpgm
.section .rodata,"a"
.p2align 6
.amdhsa_kernel {KNAME}
  .amdhsa_next_free_vgpr {vgpr}
  .amdhsa_next_free_sgpr 102
  .amdhsa_accum_offset {vgpr}
  .amdhsa_group_segment_fixed_size 0
  .amdhsa_kernarg_size 96
  .amdhsa_user_sgpr_count 2
  .amdhsa_user_sgpr_kernarg_segment_ptr 1
  .amdhsa_system_sgpr_workgroup_id_x 1
.end_amdhsa_kernel
"""

if __name__ == "__main__":
    out = sys.argv[1] if len(sys.argv) > 1 else "k3.s"
    st = len(sys.argv) > 2 and sys.argv[2] == "stamps"
    if len(sys.argv) > 3: KVDEPTH = int(sys.argv[3])
    open(out, "w").write(full(st))
    print("wrote", out)
```

```python
from gen2 import *
import gen2

QP   = 0x000000
GUP  = 0x040000
OPO  = 0x0D0000
OPML = 0x110000
PP   = 0x120000
EPOCH = 0x250000
L_QS = 0
L_QB = 8192
L_HX = 8704
L_ML = 8960
L_OW = 9216
L_DR = 17408
L_SR = 35840
L_FR = 45056
L_FLG = 45568
L_XN = 45632
LDS_BYTES = 45632 + 2304
gen2.L_FLG = L_FLG

MBW = 25
FLG_ISS = 7
FLG_QI = 8
L_XS = L_XN + 2048
KVDEPTH = 0
XX = list(range(16, 25))
ASET = [32, 36]
D1 = 40
T1, T2 = 56, 92
VM, VT = 29, 7

def build(stamps=False):
    g = G(stamps)
    g(f"s_cmp_ge_u32 s{S_WG}, 256")
    g("s_cbranch_scc1 L_EXIT")
    if stamps: g("s_memrealtime s[94:95]")
    g("s_load_dwordx16 s[16:31], s[0:1], 0")
    g("s_load_dwordx8 s[32:39], s[0:1], 64")
    g("v_lshrrev_b32 v2, 6, v0")
    g("v_and_b32 v1, 63, v0")
    g(f"s_lshr_b32 s{S_G}, s{S_WG}, 4")
    g(f"s_and_b32 s{S_C}, s{S_WG}, 15")
    g(f"v_readfirstlane_b32 s{S_WAVE}, v2")
    g(f"s_mov_b32 s{S_SCALE}, {hex(f2u(128 ** -0.5))}")
    g(f"s_mov_b32 s{S_LOG2E}, {hex(f2u(1.4426950408889634))}")
    g("v_lshrrev_b32 v2, 4, v1")
    g("v_and_b32 v3, 15, v1")
    g("s_waitcnt lgkmcnt(0)")
    g(f"s_add_u32 s98, s{PTR['WS']}, {EPOCH}")
    g(f"s_addc_u32 s99, s{PTR['WS']+1}, 0")
    g(f"s_load_dword s{S_EPOCH}, s[98:99], 0")
    g.srd("WS")
    Lz = g.newlabel("ZF")
    g(f"s_cmp_lg_u32 s{S_WAVE}, 0")
    g(f"s_cbranch_scc1 {Lz}")
    g("v_mov_b32 v8, 0"); g("v_mov_b32 v9, 0"); g("v_mov_b32 v10, 0"); g("v_mov_b32 v11, 0")
    g(f"v_mov_b32 v12, {L_FLG}")
    g("ds_write_b128 v12, v[8:11]")
    g("ds_write_b128 v12, v[8:11] offset:16")
    g("ds_write_b128 v12, v[8:11] offset:32")
    g("s_waitcnt lgkmcnt(0)")
    g.label(Lz)
    g("s_barrier")
    g(f"s_cmp_ge_u32 s{S_WAVE}, 8")
    g("s_cbranch_scc1 L_AWAVE")
    build_w(g)
    build_a(g)
    g.label("L_EXIT")
    return g

def build_a(g):
    g.label("L_AWAVE")
    g.srd("K"); g.srd("V")
    g(f"s_sub_u32 s6, s{S_WAVE}, 8")
    g(f"s_lshl_b32 s7, s{S_G}, 22")
    g(f"s_lshl_b32 s8, s{S_C}, 16")
    g("s_add_u32 s7, s7, s8")
    g("s_lshl_b32 s8, s6, 13")
    g("s_add_u32 s7, s7, s8")
    g("s_add_u32 s7, s7, 0x300000")
    g("s_add_u32 s8, s7, 4096")
    g("v_and_b32 v4, 3, v3")
    g("v_lshlrev_b32 v4, 2, v4")
    g("v_lshrrev_b32 v5, 2, v3")
    g("v_add_u32 v4, v4, v5")
    g("v_lshlrev_b32 v4, 8, v4")
    g("v_lshlrev_b32 v5, 4, v2")
    g("v_add_u32 v4, v4, v5")
    g("v_lshlrev_b32 v5, 4, v1")
    g(f"s_and_b32 s9, s{S_WG}, 7")
    g("v_and_b32 v8, 3, v3"); g("v_lshlrev_b32 v8, 2, v8"); g("v_lshrrev_b32 v9, 2, v3"); g("v_add_u32 v8, v8, v9")
    g("s_lshl_b32 s10, s9, 2")
    g("v_add_u32 v8, s10, v8")
    g("v_add_u32 v9, 16, v8")
    g("v_and_b32 v8, 31, v8"); g("v_and_b32 v9, 31, v9")
    g("v_lshlrev_b32 v10, 4, v2")
    g("v_lshl_add_u32 v4, v8, 8, v10")
    g("v_lshl_add_u32 v6, v9, 8, v10")
    lds_wait(g, FLG_ISS, 8)
    KB, VB = 32, 64
    nissued = 0
    def throttle():
        nonlocal nissued
        if KVDEPTH and nissued >= KVDEPTH:
            g(f"s_waitcnt vmcnt({KVDEPTH-1})")
        nissued += 1
    for t in range(2):
        for s in range(4):
            throttle()
            g(f"buffer_load_dwordx4 {vq(KB + (t*4+s)*4)}, v{4 if t == 0 else 6}, {sr('K')}, s7 offen offset:{s*64} nt")
    for n in range(8):
        throttle()
        g(f"s_add_u32 s10, s9, {n}"); g("s_and_b32 s10, s10, 7"); g("s_lshl_b32 s10, s10, 10"); g("s_add_u32 s10, s10, s7")
        g(f"buffer_load_dwordx4 {vq(VB + 4*n)}, v5, {sr('V')}, s10 offen nt")
    lds_signal(g, FLG_Q1)
    MB = 120
    make_masks(g, 1, MB, 8, 9)
    g("v_lshrrev_b32 v6, 3, v1")
    g("v_and_b32 v6, 1, v6")
    g("v_lshlrev_b32 v6, 8, v6")
    g("v_lshl_add_u32 v6, v2, 4, v6")
    g(f"v_add_u32 v6, {L_QB}, v6")
    lds_wait(g, FLG_Q2, 4)
    QB_ = 96
    for s in range(4):
        g(f"ds_read_b128 {vq(QB_ + 4*s)}, v6 offset:{s*64}")
    g("s_waitcnt vmcnt(8) lgkmcnt(0)")
    stamp(g, 0)
    SB = 112
    for s in range(4):
        for t in range(2):
            mfma(g, SB + 4*t, KB + (t*4+s)*4, QB_ + 4*s, None if s == 0 else SB + 4*t)
    g.nop(8)
    for k in range(0, 8, 2):
        a, b = SB + k, SB + k + 1
        g(f"v_cvt_pk_bf16_f32 v8, v{a}, v{b}")
        g(f"v_lshlrev_b32 v{a}, 16, v8")
        g(f"v_and_b32 v{b}, 0xffff0000, v8")
        g(f"v_mul_f32 v{a}, s{S_SCALE}, v{a}")
        g(f"v_mul_f32 v{b}, s{S_SCALE}, v{b}")
        g(f"v_cvt_pk_bf16_f32 v8, v{a}, v{b}")
        g(f"v_lshlrev_b32 v{a}, 16, v8")
        g(f"v_and_b32 v{b}, 0xffff0000, v8")
    g(f"v_max3_f32 v12, v{SB}, v{SB+1}, v{SB+2}")
    g(f"v_max3_f32 v12, v12, v{SB+3}, v{SB+4}")
    g(f"v_max3_f32 v12, v12, v{SB+5}, v{SB+6}")
    g(f"v_max_f32 v12, v12, v{SB+7}")
    rowswap(g, 12, 9, "v_max_f32")
    g(f"v_mul_f32 v10, s{S_LOG2E}, v12")
    for k in range(8):
        g(f"v_fma_f32 v{SB+k}, v{SB+k}, s{S_LOG2E}, -v10")
    for k in range(8):
        g(f"v_exp_f32 v{SB+k}, v{SB+k}")
    g.nop(1)
    g(f"v_add_f32 v13, v{SB}, v{SB+1}")
    for k in range(2, 8):
        g(f"v_add_f32 v13, v13, v{SB+k}")
    rowswap(g, 13, 9, "v_add_f32")
    for k in range(8):
        g(f"v_cvt_pk_bf16_f32 v{SB+k}, v{SB+k}, v{SB+k}")
    g("s_waitcnt vmcnt(0)")
    stamp(g, 1)
    DO = 124
    aset = [16, 20]
    def ands(n):
        for r in range(4):
            g(f"v_and_b32 v{aset[n%2]+r}, v{SB+n}, v{MB+r}")
    ands(0)
    for n in range(8):
        if n + 1 < 8: ands(n + 1)
        else: g.nop(2)
        mfma(g, DO, aset[n % 2], VB + 4*n, None if n == 0 else DO)
    g("v_lshrrev_b32 v8, 1, v2")
    g("v_lshlrev_b32 v8, 9, v8")
    g("v_lshl_add_u32 v8, v3, 5, v8")
    g("v_and_b32 v9, 1, v2")
    g("v_lshl_add_u32 v8, v9, 4, v8")
    g("s_lshl_b32 s9, s6, 10")
    g(f"s_add_u32 s9, s9, {L_OW}")
    g("v_add_u32 v8, s9, v8")
    g("v_lshrrev_b32 v9, 3, v1")
    g("v_and_b32 v9, 1, v9")
    g("v_lshlrev_b32 v9, 3, v9")
    g("s_lshl_b32 s9, s6, 4")
    g(f"s_add_u32 s9, s9, {L_ML}")
    g("v_add_u32 v9, s9, v9")
    g("ds_write_b64 v9, v[12:13]")
    g.nop(4)
    g(f"ds_write_b128 v8, {vq(DO)}")
    lds_signal(g, FLG_ATT, 14, 15)
    stamp(g, 2)
    Lend = g.newlabel("AEND")
    g("s_cmp_ge_u32 s6, 4")
    g(f"s_cbranch_scc1 {Lend}")
    AVM, AVT = 28, 29
    tag_regs(g, AVM, AVT)
    g("s_lshr_b32 s9, s6, 1")
    g("s_lshl_b32 s10, s9, 3")
    g(f"s_add_u32 s10, s10, {L_ML}")
    g("v_mov_b32 v8, s10")
    g("s_lshl_b32 s10, s6, 8")
    g("v_lshl_add_u32 v7, v1, 2, s10")
    g(f"v_add_u32 v9, {L_OW}, v7")
    lds_wait(g, FLG_ATT, 8, 14, 15)
    stamp(g, 3)
    for w in range(8):
        g(f"ds_read_b64 v[{32+2*w}:{33+2*w}], v8 offset:{w*16}")
    for w in range(8):
        g(f"ds_read_b32 v{48+w}, v9 offset:{w*1024}")
    g("s_waitcnt lgkmcnt(0)")
    g("v_max3_f32 v10, v32, v34, v36")
    g("v_max3_f32 v10, v10, v38, v40")
    g("v_max3_f32 v10, v10, v42, v44")
    g("v_max_f32 v10, v10, v46")
    g(f"v_mul_f32 v11, s{S_LOG2E}, v10")
    for w in range(8):
        g(f"v_fma_f32 v{32+2*w}, v{32+2*w}, s{S_LOG2E}, -v11")
    for w in range(8):
        g(f"v_exp_f32 v{32+2*w}, v{32+2*w}")
    g.nop(1)
    g("v_mul_f32 v11, v32, v33")
    g("v_mul_f32 v12, v32, v48")
    for w in range(1, 8):
        g(f"v_fmac_f32 v11, v{32+2*w}, v{33+2*w}")
        g(f"v_fmac_f32 v12, v{32+2*w}, v{48+w}")
    add_tag(g, [10, 11, 12], AVM, AVT)
    g(f"s_lshl_b32 s10, s{S_WG}, 10")
    g(f"s_add_u32 s10, s10, {OPO}")
    g(f"buffer_store_dword v12, v7, {sr('WS')}, s10 offen sc1")
    g("s_and_b32 s11, s6, 1")
    g("s_cmp_eq_u32 s11, 0")
    Lnoml = g.newlabel("NOML")
    g(f"s_cbranch_scc0 {Lnoml}")
    g(f"s_lshl_b32 s10, s{S_WG}, 1")
    g("s_add_u32 s10, s10, s9")
    g("s_lshl_b32 s10, s10, 4")
    g(f"s_add_u32 s10, s10, {OPML}")
    g("v_mov_b32 v8, 0")
    g("v_mov_b32 v12, v10"); g("v_mov_b32 v13, v11"); g("v_mov_b32 v14, v10"); g("v_mov_b32 v15, v11")
    g("v_cmp_eq_u32 vcc, 0, v1")
    g(f"s_and_saveexec_b64 s[{S_EX}:{S_EX+1}], vcc")
    g(f"buffer_store_dwordx4 v[12:15], v8, {sr('WS')}, s10 offen sc1")
    g(f"s_mov_b64 exec, s[{S_EX}:{S_EX+1}]")
    g.label(Lnoml)
    g.label(Lend)
    stamp(g, 4)
    store_stamps(g, 5)
    g("s_branch L_EXIT")

def build_w(g):
    g("s_setprio 2")
    g("v_lshlrev_b32 v31, 4, v1")
    g("v_lshlrev_b32 v30, 5, v3")
    g("v_lshl_add_u32 v30, v2, 4, v30")
    Lw0, Lw1, Lgu, Lnone, Ljoin = [g.newlabel(x) for x in ("W0", "W1", "GU", "NONE", "P1JOIN")]
    g(f"s_cmp_eq_u32 s{S_WAVE}, 0"); g(f"s_cbranch_scc1 {Lw0}")
    g(f"s_cmp_eq_u32 s{S_WAVE}, 1"); g(f"s_cbranch_scc1 {Lw1}")
    g(f"s_sub_u32 s6, s{S_WAVE}, 2")
    g(f"s_and_b32 s7, s{S_WG}, 1")
    g("s_sub_u32 s8, 5, s7")
    g("s_cmp_lt_u32 s6, s8")
    g(f"s_cbranch_scc1 {Lgu}")
    g(f"s_branch {Lnone}")
    g.label(Lw0); phase1(g, True, "wq"); g(f"s_branch {Ljoin}")
    g.label(Lw1); phase1(g, False, "wq"); g(f"s_branch {Ljoin}")
    g.label(Lgu); phase1(g, False, "gu"); g(f"s_branch {Ljoin}")
    g.label(Lnone); phase1(g, False, None)
    g.label(Ljoin)
    stamp(g, 0)
    Lq = g.newlabel("NOQ"); Lqg = g.newlabel("QG")
    g(f"s_cmp_lt_u32 s{S_WAVE}, 2"); g(f"s_cbranch_scc1 {Lqg}")
    g(f"s_cmp_lt_u32 s{S_WAVE}, 6"); g(f"s_cbranch_scc1 {Lq}")
    g.label(Lqg)
    Lni = g.newlabel("NOIND")
    g(f"s_cmp_lg_u32 s{S_WAVE}, 7")
    g(f"s_cbranch_scc1 {Lni}")
    g("v_bfe_u32 v12, v1, 1, 4")
    g("v_and_b32 v13, 1, v1")
    g("v_lshlrev_b32 v15, 10, v12")
    g("v_lshl_add_u32 v15, v13, 9, v15")
    g(f"s_lshl_b32 s6, s{S_G}, 14")
    g(f"s_add_u32 s6, s6, {QP + 496}")
    poll_loads(g, [(48, 4, 15, "WS", "s6", 0)], 13, VT, strip=False)
    lds_signal(g, FLG_QI)
    g.label(Lni)
    lds_wait(g, FLG_QI, 1)
    g(f"s_sub_u32 s8, s{S_WAVE}, 4")
    g(f"s_cmp_lt_u32 s{S_WAVE}, 2")
    g(f"s_cselect_b32 s8, s{S_WAVE}, s8")
    g("v_lshlrev_b32 v12, 10, v2")
    g("v_lshl_add_u32 v15, v3, 4, v12")
    g(f"s_lshl_b32 s6, s{S_G}, 14")
    g("s_lshl_b32 s7, s8, 8")
    g("s_add_u32 s6, s6, s7")
    g(f"s_add_u32 s6, s6, {QP}")
    g("s_add_u32 s7, s6, 4096"); g("s_add_u32 s9, s6, 8192"); g("s_add_u32 s10, s6, 12288")
    poll_loads(g, [(48, 4, 15, "WS", "s6", 0), (52, 4, 15, "WS", "s7", 0), (56, 4, 15, "WS", "s9", 0), (60, 4, 15, "WS", "s10", 0)], 13, VT)
    stamp(g, 1)
    for r in range(4):
        g(f"v_add_f32 v{48+r}, v{48+r}, v{52+r}")
        g(f"v_add_f32 v{56+r}, v{56+r}, v{60+r}")
    for r in range(4):
        g(f"v_add_f32 v{48+r}, v{48+r}, v{56+r}")
    for r in range(4):
        rowswap(g, 48 + r, 12, "v_add_f32")
    g("v_cvt_pk_bf16_f32 v48, v48, v49")
    g("v_cvt_pk_bf16_f32 v49, v50, v51")
    g("s_lshl_b32 s6, s8, 7")
    g("v_lshl_add_u32 v12, v3, 3, s6")
    g(f"ds_write_b64 v12, v[48:49] offset:{L_QB}")
    lds_signal(g, FLG_Q2)
    g.label(Lq)
    stamp(g, 2)
    Lp2d = g.newlabel("P2DOWN"); Lp2j = g.newlabel("P2JOIN"); Lred = g.newlabel("P2RED")
    g("v_lshrrev_b32 v6, 3, v3")
    g("v_lshl_add_u32 v6, v2, 1, v6")
    g("s_movk_i32 s6, 1152")
    g("v_mul_lo_u32 v6, v6, s6")
    g("v_and_b32 v12, 7, v3")
    g("v_lshl_add_u32 v6, v12, 4, v6")
    g(f"s_cmp_ge_u32 s{S_WAVE}, 5"); g(f"s_cbranch_scc1 {Lred}")
    g(f"s_cmp_ge_u32 s{S_WAVE}, 2"); g(f"s_cbranch_scc1 {Lp2d}")
    g(f"s_lshl_b32 s6, s{S_WG}, 4")
    g(f"s_lshl_b32 s7, s{S_WAVE}, 3")
    g("s_add_u32 s6, s6, s7")
    g("s_mul_i32 s6, s6, 1152")
    lds_wait(g, FLG_Q1, 8)
    for cb in range(9):
        g(f"buffer_load_dwordx4 {vq(T2 + 4*cb)}, v6, {sr('WO')}, s6 offen offset:{cb*128} nt")
    wo_task(g)
    stamp(g, 3)
    g(f"s_branch {Lp2j}")
    g.label(Lp2d)
    down_task(g, Lp2j)
    stamp(g, 3)
    g(f"s_branch {Lp2j}")
    g.label(Lred)
    g(f"s_and_b32 s9, s{S_WG}, 3")
    g("s_cmp_eq_u32 s9, 0")
    L3 = g.newlabel("RED3"); Lr2 = g.newlabel("REDJ")
    g(f"s_cbranch_scc1 {L3}")
    lds_wait(g, FLG_DR, 2)
    red_publish(g, L_DR, 4, 32)
    g(f"s_branch {Lr2}")
    g.label(L3)
    lds_wait(g, FLG_DR, 3)
    red_publish(g, L_DR, 6, 32)
    g.label(Lr2)
    stamp(g, 3)
    lds_wait(g, FLG_SR, 2)
    stamp(g, 4)
    red_publish(g, L_SR, 4, 0)
    g.label(Lp2j)
    stamp(g, 5)
    Lfin = g.newlabel("NOFIN")
    g(f"s_cmp_ge_u32 s{S_WG}, 72")
    g(f"s_cbranch_scc1 {Lfin}")
    final(g)
    g.label(Lfin)
    stamp(g, 6)
    store_stamps(g, 12)
    g("s_branch L_EXIT")

def phase1(g, is_w0, task):
    nl = 0
    if is_w0:
        g.srd("X")
        g(f"buffer_load_dwordx4 v[48:51], v31, {sr('X')}, 0 offen")
        g(f"buffer_load_dwordx4 v[52:55], v31, {sr('X')}, 0 offen offset:1024")
    if task == "wq":
        g.srd("WQ")
        g("v_lshlrev_b32 v4, 13, v2")
        g("v_lshl_add_u32 v4, v3, 4, v4")
        g(f"s_mul_i32 s6, s{S_C}, {36*8192}")
        g(f"s_lshl_b32 s7, s{S_G}, 1")
        g(f"s_add_u32 s7, s7, s{S_WAVE}")
        g("s_lshl_b32 s7, s7, 8")
        g("s_add_u32 s6, s6, s7")
        for u in range(9):
            g(f"buffer_load_dwordx4 {vq(T1 + 4*u)}, v4, {sr('WQ')}, s6 offen nt")
            if u < 8: g(f"s_add_u32 s6, s6, {4*8192}")
        nl += 9
        g(f"s_mul_i32 s9, s{S_C}, 144")
    elif task == "gu":
        g("s_mul_i32 s7, s7, 5")
        g("s_add_u32 s6, s6, s7")
        g(f"s_lshr_b32 s7, s{S_WG}, 1")
        g("s_and_b32 s7, s7, 3")
        g("s_mul_i32 s7, s7, 9")
        g("s_add_u32 s10, s6, s7")
        g.srd("WG"); g.srd("WU")
        g("s_movk_i32 s6, 9216")
        g("v_mul_lo_u32 v5, v2, s6")
        g("v_lshl_add_u32 v5, v3, 4, v5")
        g(f"s_mul_i32 s6, s{S_G}, {36*9216}")
        g("s_lshl_b32 s7, s10, 8")
        g("s_add_u32 s6, s6, s7")
        Lup = g.newlabel("UP"); Lj = g.newlabel("GUJ")
        g(f"s_bitcmp1_b32 s{S_WG}, 3")
        g(f"s_cbranch_scc1 {Lup}")
        for name, lab in (("WG", None), ("WU", Lup)):
            if lab: g.label(lab)
            for u in range(9):
                g(f"buffer_load_dwordx4 {vq(T1 + 4*u)}, v5, {sr(name)}, s6 offen nt")
                if u < 8: g(f"s_add_u32 s6, s6, {4*9216}")
            if name == "WG": g(f"s_branch {Lj}")
        g.label(Lj)
        nl += 9
        g(f"s_mul_i32 s9, s{S_G}, 144")
    lds_signal(g, FLG_ISS)
    if not is_w0:
        g.srd("X")
    g.srd("WO"); g.srd("WD"); g.srd("OUT")
    stamp(g, 11)
    if is_w0:
        g(f"s_waitcnt vmcnt({nl})")
        stamp(g, 7)
        g(f"ds_write_b128 v31, v[48:51] offset:{L_XN}")
        g(f"ds_write_b128 v31, v[52:55] offset:{L_XN+1024}")
        g("v_mov_b32 v8, 0"); g("v_mov_b32 v9, 0")
        for k in range(8):
            r = 48 + k
            g(f"v_lshlrev_b32 v10, 16, v{r}")
            g(f"v_and_b32 v11, 0xffff0000, v{r}")
            g("v_add_f32 v8, v8, v10")
            g("v_fmac_f32 v9, v10, v10")
            g("v_add_f32 v8, v8, v11")
            g("v_fmac_f32 v9, v11, v11")
        allreduce64(g, 8, 10)
        allreduce64(g, 9, 10)
        inv = hex(f2u(1.0 / 576.0))
        g(f"v_mul_f32 v8, {inv}, v8")
        g(f"v_mul_f32 v9, {inv}, v9")
        g("v_fma_f32 v9, -v8, v8, v9")
        rnd_bf16(g, 8, 10)
        rnd_bf16(g, 9, 10)
        g(f"v_add_f32 v9, {hex(f2u(1e-5))}, v9")
        rnd_bf16(g, 9, 10)
        g("v_sqrt_f32 v9, v9")
        g.nop(1)
        rnd_bf16(g, 9, 10)
        g("v_rcp_f32 v9, v9")
        g.nop(1)
        g(f"v_mov_b32 v12, {L_XS}")
        g("ds_write_b64 v12, v[8:9]")
        lds_signal(g, FLG_LN)
    if task is None:
        g("s_waitcnt lgkmcnt(0)")
        tag_regs(g, VM, VT)
        return
    make_masks(g, 1, MBW, 8, 9)
    if not is_w0:
        lds_wait(g, FLG_LN, 1)
    g("s_lshr_b32 s9, s9, 1")
    g("v_lshl_add_u32 v10, v2, 1, s9")
    for u in range(9):
        g(f"ds_read_u16 v{XX[u]}, v10 offset:{L_XN + 8*u}")
    g(f"v_mov_b32 v12, {L_XS}")
    g("ds_read_b64 v[8:9], v12")
    g("s_waitcnt lgkmcnt(0)")
    tag_regs(g, VM, VT)
    for u in range(9):
        x = XX[u]
        g(f"v_lshlrev_b32 v{x}, 16, v{x}")
        g(f"v_sub_f32 v{x}, v{x}, v8")
        g(f"v_cvt_pk_bf16_f32 v{x}, v{x}, v{x}")
        g(f"v_lshlrev_b32 v{x}, 16, v{x}")
        g(f"v_mul_f32 v{x}, v{x}, v9")
        g(f"v_cvt_pk_bf16_f32 v{x}, v{x}, v{x}")
    stamp(g, 8)
    g("s_waitcnt vmcnt(0)")
    stamp(g, 9)
    gemv_chain(g, XX, T1, D1, MBW, ASET)
    if task == "wq":
        g(f"s_lshl_b32 s6, s{S_WG}, 10")
        g(f"s_lshl_b32 s7, s{S_WAVE}, 9")
        g("s_add_u32 s6, s6, s7")
        g(f"s_add_u32 s6, s6, {QP}")
    else:
        g(f"s_lshr_b32 s6, s{S_WG}, 3")
        g("s_and_b32 s6, s6, 1")
        g("s_lshl_b32 s6, s6, 4")
        g(f"s_add_u32 s6, s6, s{S_G}")
        g("s_mul_i32 s6, s6, 36")
        g("s_add_u32 s6, s6, s10")
        g("s_lshl_b32 s6, s6, 9")
        g(f"s_add_u32 s6, s6, {GUP}")
    g("v_cmp_gt_u32 vcc, 32, v1")
    g.nop(6)
    add_tag(g, range(D1, D1 + 4), VM, VT)
    g(f"s_and_saveexec_b64 s[{S_EX}:{S_EX+1}], vcc")
    g(f"buffer_store_dwordx4 {vq(D1)}, v30, {sr('WS')}, s6 offen sc1")
    g(f"s_mov_b64 exec, s[{S_EX}:{S_EX+1}]")

def operand_from_x8(g):
    g(f"s_lshl_b32 s6, s{S_WAVE}, 5")
    g(f"s_add_u32 s6, s6, {L_HX}")
    g("v_and_b32 v12, 1, v1")
    g("v_lshl_add_u32 v12, v12, 4, s6")
    g("v_cmp_gt_u32 vcc, 2, v1")
    g.nop(2)
    g(f"s_and_saveexec_b64 s[{S_EX}:{S_EX+1}], vcc")
    g("ds_write_b128 v12, v[8:11]")
    g(f"s_mov_b64 exec, s[{S_EX}:{S_EX+1}]")
    g("v_lshrrev_b32 v12, 3, v3")
    g("v_lshl_add_u32 v12, v2, 1, v12")
    g("v_lshl_add_u32 v12, v12, 2, s6")
    g("ds_read_b32 v16, v12")
    g("s_waitcnt lgkmcnt(0)")
    g("v_cvt_pk_bf16_f32 v16, v16, v16")

def nine_mfma(g, red_base, wsub_sreg, flag):
    make_masks(g, 1, MBW, 12, 13)
    for r in range(4):
        g(f"v_and_b32 v{ASET[0]+r}, v16, v{MBW+r}")
    g("s_waitcnt vmcnt(0)")
    g.nop(2)
    for cb in range(9):
        mfma(g, T1 + 4*cb, ASET[0], T2 + 4*cb, None)
    g("v_lshrrev_b32 v12, 3, v3")
    g("s_movk_i32 s7, 2304")
    g("v_mul_lo_u32 v13, v12, s7")
    g("v_and_b32 v14, 7, v3")
    g("v_lshl_add_u32 v13, v14, 5, v13")
    g("v_and_b32 v14, 1, v2")
    g("v_lshl_add_u32 v13, v14, 4, v13")
    g(f"s_mul_i32 s7, {wsub_sreg}, 4608")
    g(f"s_add_u32 s7, s7, {red_base}")
    g("v_add_u32 v13, s7, v13")
    g("v_lshrrev_b32 v14, 1, v2")
    g("v_cmp_eq_u32 vcc, v12, v14")
    g.nop(2)
    g(f"s_and_saveexec_b64 s[{S_EX}:{S_EX+1}], vcc")
    for cb in range(9):
        g(f"ds_write_b128 v13, {vq(T1 + 4*cb)} offset:{cb*256}")
    g(f"s_mov_b64 exec, s[{S_EX}:{S_EX+1}]")
    lds_signal(g, flag)

def down_task(g, Lskip):
    g(f"s_and_b32 s9, s{S_WG}, 3")
    g("s_lshl_b32 s10, s9, 1")
    g("s_add_u32 s10, s10, 1")
    g("s_cmp_eq_u32 s9, 0")
    g("s_cselect_b32 s10, 0, s10")
    g("s_cselect_b32 s11, 3, 2")
    g(f"s_sub_u32 s8, s{S_WAVE}, 2")
    g("s_cmp_ge_u32 s8, s11")
    g(f"s_cbranch_scc1 {Lskip}")
    g(f"s_lshr_b32 s9, s{S_WG}, 2")
    g("s_mul_i32 s9, s9, 9")
    g("s_add_u32 s9, s9, s10")
    g("s_add_u32 s9, s9, s8")
    g("v_lshrrev_b32 v8, 5, v1")
    g("v_lshlrev_b32 v8, 4, v8")
    g("v_bfe_u32 v9, v1, 1, 4")
    g("v_add_u32 v8, v8, v9")
    g("s_movk_i32 s10, 18432")
    g("v_mul_lo_u32 v8, v8, s10")
    g("v_and_b32 v9, 1, v1")
    g("v_lshl_add_u32 v15, v9, 4, v8")
    g("s_lshl_b32 s10, s9, 5")
    g(f"s_add_u32 s10, s10, {GUP}")
    poll_loads(g, [(8, 4, 15, "WS", "s10", 0)], 13, VT)
    stamp(g, 1)
    g("s_mul_i32 s6, s9, 9216")
    lds_wait(g, FLG_Q1, 8)
    for cb in range(9):
        g(f"buffer_load_dwordx4 {vq(T2 + 4*cb)}, v6, {sr('WD')}, s6 offen offset:{cb*128} nt")
    for r in range(4):
        reduce_bits1to4(g, 8 + r, 12, "v_add_f32")
    for r in range(4):
        rnd_bf16(g, 8 + r, 12)
    for r in range(4):
        g(f"v_mov_b32 v{48+r}, v{8+r}")
    g.nop(2)
    for r in range(4):
        g(f"v_permlane32_swap_b32 v{8+r}, v{48+r}")
    g.nop(1)
    for r in range(4):
        silu(g, 8 + r, 12)
        rnd_bf16(g, 8 + r, 12)
        g(f"v_mul_f32 v{8+r}, v{8+r}, v{48+r}")
        rnd_bf16(g, 8 + r, 12)
    operand_from_x8(g)
    nine_mfma(g, L_DR, "s8", FLG_DR)

def wo_task(g):
    g("v_bfe_u32 v12, v1, 1, 4")
    g("v_and_b32 v13, 1, v1")
    g("v_lshlrev_b32 v14, 10, v12")
    g("v_lshl_add_u32 v14, v13, 4, v14")
    g("v_lshlrev_b32 v15, 5, v12")
    g(f"s_lshl_b32 s6, s{S_G}, 14")
    g(f"s_lshr_b32 s7, s{S_C}, 3")
    g("s_lshl_b32 s9, s7, 9")
    g("s_add_u32 s6, s6, s9")
    g(f"s_and_b32 s9, s{S_C}, 7")
    g("s_lshl_b32 s9, s9, 6")
    g("s_add_u32 s6, s6, s9")
    g(f"s_mov_b32 s8, s{S_WAVE}")
    g("s_lshl_b32 s9, s8, 5")
    g("s_add_u32 s6, s6, s9")
    g(f"s_add_u32 s6, s6, {OPO}")
    g(f"s_lshl_b32 s9, s{S_G}, 9")
    g("s_lshl_b32 s7, s7, 4")
    g("s_add_u32 s9, s9, s7")
    g(f"s_add_u32 s9, s9, {OPML}")
    poll_loads(g, [(8, 4, 14, "WS", "s6", 0), (48, 4, 15, "WS", "s9", 0)], 12, VT)
    stamp(g, 4)
    g("v_mov_b32 v50, v48")
    reduce_bits1to4(g, 50, 12, "v_max_f32")
    g("v_sub_f32 v48, v48, v50")
    g(f"v_mul_f32 v48, s{S_LOG2E}, v48")
    g("v_exp_f32 v48, v48")
    g.nop(1)
    g("v_mul_f32 v49, v49, v48")
    reduce_bits1to4(g, 49, 12, "v_add_f32")
    for r in range(4):
        g(f"v_mul_f32 v{8+r}, v{8+r}, v48")
        reduce_bits1to4(g, 8 + r, 12, "v_add_f32")
    g("v_rcp_f32 v49, v49")
    g.nop(1)
    for r in range(4):
        g(f"v_mul_f32 v{8+r}, v{8+r}, v49")
        rnd_bf16(g, 8 + r, 12)
    operand_from_x8(g)
    nine_mfma(g, L_SR, "s8", FLG_SR)

def red_publish(g, red_base, nsum, dstoff):
    g(f"s_sub_u32 s6, s{S_WAVE}, 5")
    g("s_lshl_b32 s6, s6, 6")
    g("v_add_u32 v12, s6, v1")
    g("v_cmp_gt_u32 vcc, 144, v12")
    g.nop(2)
    g(f"s_and_saveexec_b64 s[{S_EX}:{S_EX+1}], vcc")
    Lsk = g.newlabel("REDSK")
    g(f"s_cbranch_execz {Lsk}")
    g("v_lshlrev_b32 v13, 4, v12")
    g(f"v_add_u32 v13, {red_base}, v13")
    for k in range(nsum):
        g(f"ds_read_b128 {vq(56 + 4*k)}, v13 offset:{k*2304}")
    g("s_waitcnt lgkmcnt(0)")
    for k in range(1, nsum):
        for r in range(4):
            g(f"v_add_f32 v{56+r}, v{56+r}, v{56+4*k+r}")
    g("v_lshrrev_b32 v13, 1, v12")
    g("v_lshlrev_b32 v13, 14, v13")
    g("v_and_b32 v14, 1, v12")
    g("v_lshl_add_u32 v13, v14, 4, v13")
    g(f"s_lshl_b32 s6, s{S_WG}, 6")
    g(f"s_add_u32 s6, s6, {PP + dstoff}")
    add_tag(g, range(56, 60), VM, VT)
    g(f"buffer_store_dwordx4 v[56:59], v13, {sr('WS')}, s6 offen sc1")
    g.label(Lsk)
    g(f"s_mov_b64 exec, s[{S_EX}:{S_EX+1}]")

def final(g):
    g(f"s_lshl_b32 s6, s{S_WAVE}, 6")
    g("v_add_u32 v12, s6, v1")
    g("v_lshrrev_b32 v14, 1, v12")
    g("v_lshlrev_b32 v14, 6, v14")
    g("v_and_b32 v13, 1, v12")
    g("v_lshl_add_u32 v14, v13, 4, v14")
    g(f"s_lshl_b32 s6, s{S_WG}, 14")
    g(f"s_add_u32 s6, s6, {PP}")
    poll_loads(g, [(48, 4, 14, "WS", "s6", 0), (52, 4, 14, "WS", "s6", 32)], 12, VT)
    for r in range(8):
        reduce_bits1to4(g, 48 + r, 12, "v_add_f32")
        rowswap(g, 48 + r, 12, "v_add_f32", do16=False, do32=True)
    g(f"s_lshl_b32 s6, s{S_WAVE}, 6")
    g(f"s_add_u32 s6, s6, {L_FR}")
    g("v_lshl_add_u32 v12, v1, 5, s6")
    g("v_cmp_gt_u32 vcc, 2, v1")
    g.nop(2)
    g(f"s_and_saveexec_b64 s[{S_EX}:{S_EX+1}], vcc")
    g("ds_write_b128 v12, v[48:51]")
    g("ds_write_b128 v12, v[52:55] offset:16")
    g(f"s_mov_b64 exec, s[{S_EX}:{S_EX+1}]")
    lds_signal(g, FLG_FR)
    Lf = g.newlabel("FINW0")
    g(f"s_cmp_lg_u32 s{S_WAVE}, 0")
    g(f"s_cbranch_scc1 {Lf}")
    g("v_lshlrev_b32 v10, 1, v1")
    g(f"s_lshl_b32 s8, s{S_WG}, 4")
    g(f"buffer_load_ushort v9, v10, {sr('X')}, s8 offen")
    lds_wait(g, FLG_FR, 8)
    g("v_lshrrev_b32 v12, 2, v1")
    g("v_lshlrev_b32 v12, 5, v12")
    g("v_and_b32 v13, 3, v1")
    g("v_lshl_add_u32 v12, v13, 2, v12")
    g(f"v_add_u32 v12, {L_FR}, v12")
    g("v_cmp_gt_u32 vcc, 8, v1")
    g.nop(2)
    g(f"s_and_saveexec_b64 s[{S_EX}:{S_EX+1}], vcc")
    for w in range(8):
        g(f"ds_read_b32 v{48+w}, v12 offset:{w*64}")
        g(f"ds_read_b32 v{56+w}, v12 offset:{w*64+16}")
    g("s_waitcnt vmcnt(0) lgkmcnt(0)")
    for w in range(1, 8):
        g(f"v_add_f32 v48, v48, v{48+w}")
        g(f"v_add_f32 v56, v56, v{56+w}")
    rnd_bf16(g, 48, 12)
    rnd_bf16(g, 56, 12)
    silu(g, 56, 12)
    rnd_bf16(g, 56, 12)
    g("v_mul_f32 v48, v48, v56")
    rnd_bf16(g, 48, 12)
    g("v_lshlrev_b32 v9, 16, v9")
    g("v_add_f32 v48, v48, v9")
    g("v_cvt_pk_bf16_f32 v48, v48, v48")
    g(f"buffer_store_short v48, v10, {sr('OUT')}, s8 offen")
    g(f"s_mov_b64 exec, s[{S_EX}:{S_EX+1}]")
    Le = g.newlabel("NOEPOCH")
    g(f"s_cmp_lg_u32 s{S_WG}, 0")
    g(f"s_cbranch_scc1 {Le}")
    g(f"s_add_u32 s6, s{S_EPOCH}, 1")
    g("v_mov_b32 v12, s6")
    g("v_mov_b32 v13, 0")
    g(f"s_mov_b32 s7, {EPOCH}")
    g("v_cmp_eq_u32 vcc, 0, v1")
    g(f"s_and_saveexec_b64 s[{S_EX}:{S_EX+1}], vcc")
    g(f"buffer_store_dword v12, v13, {sr('WS')}, s7 offen")
    g(f"s_mov_b64 exec, s[{S_EX}:{S_EX+1}]")
    g.label(Le)
    g.label(Lf)

def full(stamps=False, vgpr=128):
    g = build(stamps)
    return HEADER + f"""; @launch grid=(256,1,1) block=(1024,1,1) lds={LDS_BYTES}
.amdgcn_target "amdgcn-amd-amdhsa--gfx950"
.text
.globl {KNAME}
.p2align 8
.type {KNAME},@function
{KNAME}:
{g.text()}
  s_endpgm
.section .rodata,"a"
.p2align 6
.amdhsa_kernel {KNAME}
  .amdhsa_next_free_vgpr {vgpr}
  .amdhsa_next_free_sgpr 102
  .amdhsa_accum_offset {vgpr}
  .amdhsa_group_segment_fixed_size 0
  .amdhsa_kernarg_size 96
  .amdhsa_user_sgpr_count 2
  .amdhsa_user_sgpr_kernarg_segment_ptr 1
  .amdhsa_system_sgpr_workgroup_id_x 1
.end_amdhsa_kernel
"""

if __name__ == "__main__":
    out = sys.argv[1] if len(sys.argv) > 1 else "k3.s"
    st = len(sys.argv) > 2 and sys.argv[2] == "stamps"
    if len(sys.argv) > 3: KVDEPTH = int(sys.argv[3])
    open(out, "w").write(full(st))
    print("wrote", out)
```
